```python
import torch

def _softmax(x, axis=-1):
    return torch.softmax(x, dim=axis)
def _gelu(x):
    return torch.nn.functional.gelu(x, approximate="tanh")
def _silu(x):
    return torch.nn.functional.silu(x)
def _sigmoid(x):
    return torch.sigmoid(x)
def _layernorm(x, axis=-1, eps=1e-5):
    m = x.mean(dim=axis, keepdim=True)
    v = x.var(dim=axis, keepdim=True, unbiased=False)
    return (x - m) / torch.sqrt(v + eps)
def _scatter_add(tgt, idx, src, axis=0):
    return tgt.clone().index_add_(axis, idx, src)
def _segment_sum(src, seg, n):
    out = torch.zeros((n,) + src.shape[1:], dtype=src.dtype)
    return out.index_add_(0, seg, src)
def _pad(x, pw):
    flat = tuple(v for pair in reversed(pw) for v in pair)
    return torch.nn.functional.pad(x, flat)

kernel_name = 'recurrent_scan__spectral_gfnet__dense_activation_silu__prompt'

def setup_inputs():

    _w = (lambda a: (lambda t: t.to(torch.bfloat16) if t.is_floating_point() else t)(torch.as_tensor(a)))
    def _A_setup():
        B, S, D = 1, 2048, 512
        Df = D // 2 + 1
        return {
            "x": _w((lambda *s: torch.randn(*s, dtype=torch.bfloat16) * 0.05)(B, S, D)),
            "w_r": _w((lambda *s: torch.randn(*s, dtype=torch.bfloat16) * 3.2)(S, Df) * 0.02),
            "w_i": _w((lambda *s: torch.randn(*s, dtype=torch.bfloat16) * 3.2)(S, Df) * 0.02),
        }
    _A_in = _A_setup()

    def _B_setup():
        B, S, D, F = 1, 2048, 512, 1792
        return {
            "x": _w((lambda *s: torch.randn(*s, dtype=torch.bfloat16) * 0.05)(B, S, D)),
            "w1": _w((lambda *s: torch.randn(*s, dtype=torch.bfloat16) * 3.2)(D, F) * (D ** -0.5)),
            "w2": _w((lambda *s: torch.randn(*s, dtype=torch.bfloat16) * 0.4)(F, D) * (F ** -0.5)),
        }
    _B_in = _B_setup()

    return {
        "A_x": _A_in["x"],
        "A_w_r": _A_in["w_r"],
        "A_w_i": _A_in["w_i"],
        "B_x": _B_in["x"],
        "B_w1": _B_in["w1"],
        "B_w2": _B_in["w2"],
    }

def reference(A_x, A_w_r, A_w_i, B_x, B_w1, B_w2):
    def _A_ref(x, w_r, w_i):
        B, S, D = x.shape
        X = (lambda x, axes=(-2,-1): torch.fft.rfft2(x.float(), dim=axes))(x, axes=(-2, -1))
        W = w_r + 1j * w_i
        X = X * W
        y = (lambda x, s, axes=(-2,-1): torch.fft.irfft2(x, s=s, dim=axes).to(torch.bfloat16))(X, (S, D), axes=(-2, -1))
        return y

    def _B_ref(x, w1, w2):
        h = torch.einsum("bsd,df->bsf", x, w1)
        h = _silu(h)
        out = torch.einsum("bsf,fd->bsd", h, w2)
        return out

    x = A_x
    xn = _layernorm(x, axis=-1)
    s = _A_ref(xn, A_w_r, A_w_i)
    g = _silu(_B_ref(xn, B_w1, B_w2))
    return x + s * g
```

```python
KNAME = "recurrent_scan__spectral_gfnet__dense_activation_silu__prompt"

HEADER = """; Kernarg layout for this problem (72 bytes, ptrs only, base s[0:1]):
"""

class Kernel:
    def __init__(self, name, grid, block, lds=0, vgpr=128, sgpr=96, agpr=0):
        self.name = name
        self.grid = grid
        self.block = block
        self.lds = lds
        self.vgpr = vgpr
        self.sgpr = sgpr
        self.agpr = agpr
        self.lines = []
        self._lab = 0
    def __call__(self, s):
        for ln in s.strip("\n").split("\n"):
            ln = ln.strip()
            if not ln:
                continue
            if ln.endswith(":"):
                self.lines.append(ln)
            else:
                self.lines.append("    " + ln)
    def newlabel(self, base="L"):
        self._lab += 1
        return f"{base}_{self.name}_{self._lab}"
    def text(self):
        out = [f".globl {self.name}", ".p2align 8", f".type {self.name},@function", f"{self.name}:"]
        out += self.lines
        return "\n".join(out) + "\n"
    def desc(self):
        acc = (self.vgpr + 3) // 4 * 4
        nfv = acc + self.agpr if self.agpr else self.vgpr
        return f""".p2align 6
.amdhsa_kernel {self.name}
  .amdhsa_next_free_vgpr {nfv}
  .amdhsa_next_free_sgpr {self.sgpr}
  .amdhsa_accum_offset {acc}
  .amdhsa_group_segment_fixed_size 0
  .amdhsa_kernarg_size 72
  .amdhsa_user_sgpr_count 2
  .amdhsa_user_sgpr_kernarg_segment_ptr 1
  .amdhsa_system_sgpr_workgroup_id_x 1
.end_amdhsa_kernel
"""

def build(launches, extra_text="", extra_rodata=""):
    s = HEADER
    for k in launches:
        g, b = k.grid, k.block
        s += f"; @launch kernel={k.name} grid=({g},1,1) block=({b},1,1) lds={k.lds}\n"
    s += '.amdgcn_target "amdgcn-amd-amdhsa--gfx950"\n.text\n'
    seen = []
    for k in launches:
        if k not in seen:
            seen.append(k)
    for k in seen:
        s += k.text()
    s += extra_text
    s += '.section .rodata,"a"\n'
    for k in seen:
        s += k.desc()
    s += extra_rodata
    return s
```

```python
import sys, struct
from asmlib import *

def f2u(x):
    return struct.unpack("<I", struct.pack("<f", x))[0]

XN = 0
H  = 4 << 20
G  = 20 << 20
Y1 = 24 << 20
Z  = 32 << 20
Y2 = 40 << 20

def prologue(k, nblk):
    k(f"""
    s_cmp_ge_u32 s2, {nblk}
    s_cbranch_scc1 END_{k.name}
    s_load_dwordx16 s[4:19], s[0:1], 0
    s_load_dwordx2 s[20:21], s[0:1], 64
    s_waitcnt lgkmcnt(0)
    """)
def wsptr(k, d, off):
    k(f"s_add_u32 s{d}, s20, {off}\ns_addc_u32 s{d+1}, s21, 0")
def end(k):
    k(f"END_{k.name}:\ns_endpgm")

def rnd_bf16(k, v, t):
    k(f"v_cvt_pk_bf16_f32 v{t}, v{v}, v{v}\nv_lshlrev_b32 v{v}, 16, v{t}")

def wave_sum(k, v, t):
    k(f"""
    s_nop 1
    v_add_f32_dpp v{v}, v{v}, v{v} quad_perm:[1,0,3,2] row_mask:0xf bank_mask:0xf
    s_nop 1
    v_add_f32_dpp v{v}, v{v}, v{v} quad_perm:[2,3,0,1] row_mask:0xf bank_mask:0xf
    s_nop 1
    v_add_f32_dpp v{v}, v{v}, v{v} row_half_mirror row_mask:0xf bank_mask:0xf
    s_nop 1
    v_add_f32_dpp v{v}, v{v}, v{v} row_mirror row_mask:0xf bank_mask:0xf
    s_nop 1
    v_readlane_b32 s40, v{v}, 0
    v_readlane_b32 s41, v{v}, 16
    v_readlane_b32 s42, v{v}, 32
    v_readlane_b32 s43, v{v}, 48
    s_nop 3
    v_mov_b32 v{v}, s40
    v_add_f32 v{v}, s41, v{v}
    v_add_f32 v{v}, s42, v{v}
    v_add_f32 v{v}, s43, v{v}
    """)

def silu(k, v, t):
    k(f"""
    v_mul_f32 v{t}, {hex(f2u(-1.4426950408889634))}, v{v}
    v_exp_f32 v{t}, v{t}
    s_nop 1
    v_add_f32 v{t}, 1.0, v{t}
    v_rcp_f32 v{t}, v{t}
    s_nop 1
    v_mul_f32 v{v}, v{v}, v{t}
    """)

k1 = Kernel("n1_kernel", 2048, 64)
prologue(k1, 2048)
k1("""
s_lshl_b32 s3, s2, 10
v_lshlrev_b32 v1, 4, v0
v_add_u32 v1, s3, v1
global_load_dwordx4 v[4:7], v1, s[4:5]
s_waitcnt vmcnt(0)
""")
for i in range(4):
    k1(f"v_lshlrev_b32 v{8+2*i}, 16, v{4+i}\nv_and_b32 v{9+2*i}, 0xffff0000, v{4+i}")
k1("v_mov_b32 v20, 0")
for i in range(8):
    k1(f"v_add_f32 v20, v20, v{8+i}")
wave_sum(k1, 20, 21)
k1(f"v_mul_f32 v20, {hex(f2u(1/512))}, v20")
k1("v_mov_b32 v22, 0")
for i in range(8):
    k1(f"v_sub_f32 v23, v{8+i}, v20\nv_fmac_f32 v22, v23, v23")
wave_sum(k1, 22, 21)
k1(f"v_mul_f32 v22, {hex(f2u(1/512))}, v22")
rnd_bf16(k1, 22, 21)
k1(f"v_add_f32 v22, {hex(f2u(1e-5))}, v22")
rnd_bf16(k1, 22, 21)
k1("v_sqrt_f32 v22, v22\ns_nop 1")
rnd_bf16(k1, 22, 21)
k1("v_rcp_f32 v22, v22\ns_nop 1")
rnd_bf16(k1, 20, 21)
for i in range(8):
    k1(f"v_sub_f32 v{8+i}, v{8+i}, v20")
    rnd_bf16(k1, 8+i, 21)
    k1(f"v_mul_f32 v{8+i}, v{8+i}, v22")
    rnd_bf16(k1, 8+i, 21)
wsptr(k1, 22, XN)
k1("""
v_lshlrev_b32 v1, 1, v1
global_store_dwordx4 v1, v[8:11], s[22:23]
global_store_dwordx4 v1, v[12:15], s[22:23] offset:16
""")
end(k1)

def gemm(name, K, N, aoff, bptr, ooff):
    per = N // 256
    k = Kernel(name, 2048 * per, 256)
    prologue(k, 2048 * per)
    magic = (2**32 + per - 1) // per
    k(f"""
    s_mov_b32 s30, {magic}
    s_mul_hi_u32 s31, s2, s30        ; row n
    s_mul_i32 s32, s31, {per}
    s_sub_u32 s32, s2, s32
    s_lshl_b32 s32, s32, 8
    v_add_u32 v1, s32, v0            ; col j
    v_lshlrev_b32 v2, 1, v1
    s_mul_i32 s33, s31, {K*4}
    """)
    wsptr(k, 22, aoff)
    k(f"""
    s_add_u32 s22, s22, s33
    s_addc_u32 s23, s23, 0
    s_mov_b32 s24, s{bptr}
    s_mov_b32 s25, s{bptr+1}
    v_mov_b32 v3, 0
    s_mov_b32 s34, 0
    LOOP_{name}:
    s_load_dwordx8 s[44:51], s[22:23], 0
    """)
    for i in range(8):
        k(f"global_load_ushort v{8+i}, v2, s[24:25]\ns_add_u32 s24, s24, {N*2}\ns_addc_u32 s25, s25, 0")
    k("s_waitcnt vmcnt(0) lgkmcnt(0)")
    for i in range(8):
        k(f"v_lshlrev_b32 v{8+i}, 16, v{8+i}\nv_fmac_f32 v3, s{44+i}, v{8+i}")
    k(f"""
    s_add_u32 s22, s22, 32
    s_addc_u32 s23, s23, 0
    s_add_u32 s34, s34, 8
    s_cmp_lt_u32 s34, {K}
    s_cbranch_scc1 LOOP_{name}
    """)
    rnd_bf16(k, 3, 4)
    silu(k, 3, 4)
    rnd_bf16(k, 3, 4)
    wsptr(k, 26, ooff)
    k(f"""
    s_mul_i32 s33, s31, {N*4}
    v_lshlrev_b32 v2, 2, v1
    v_add_u32 v2, s33, v2
    global_store_dword v2, v3, s[26:27]
    """)
    end(k)
    return k
k2 = gemm("n2_kernel", 512, 1792, XN, 12, H)
k3 = gemm("n3_kernel", 1792, 512, H, 14, G)

k4 = Kernel("n4_kernel", 2048, 320)
prologue(k4, 2048)
wsptr(k4, 22, XN)
k4(f"""
s_lshl_b32 s33, s2, 11
s_add_u32 s22, s22, s33
s_addc_u32 s23, s23, 0
v_mov_b32 v3, 0
v_mov_b32 v4, 0
v_mov_b32 v5, 0      ; d*k2 mod 512
s_mov_b32 s34, 0
LOOP_n4:
s_load_dwordx8 s[44:51], s[22:23], 0
s_waitcnt lgkmcnt(0)
""")
for i in range(8):
    k4(f"""
    v_cvt_f32_u32 v6, v5
    v_mul_f32 v6, {hex(f2u(1/512))}, v6
    v_cos_f32 v7, v6
    v_sin_f32 v8, v6
    s_nop 1
    v_fmac_f32 v3, s{44+i}, v7
    v_fma_f32 v4, -v8, s{44+i}, v4
    v_add_u32 v5, v5, v0
    v_and_b32 v5, 511, v5
    """)
k4(f"""
s_add_u32 s22, s22, 32
s_addc_u32 s23, s23, 0
s_add_u32 s34, s34, 8
s_cmp_lt_u32 s34, 512
s_cbranch_scc1 LOOP_n4
""")
wsptr(k4, 26, Y1)
k4(f"""
s_mul_i32 s33, s2, {320*8}
v_lshlrev_b32 v2, 3, v0
v_add_u32 v2, s33, v2
v_mov_b32 v6, v3
v_mov_b32 v7, v4
global_store_dwordx2 v2, v[6:7], s[26:27]
""")
end(k4)

def coldft(name, src, dst, inverse):
    k = Kernel(name, 2048, 320)
    prologue(k, 2048)
    wsptr(k, 22, src)
    k(f"""
    v_lshlrev_b32 v2, 3, v0
    v_mov_b32 v3, 0
    v_mov_b32 v4, 0
    s_mov_b32 s35, 0      ; n*k1 mod 2048
    s_mov_b32 s34, 0
    LOOP_{name}:
    """)
    for i in range(4):
        k(f"global_load_dwordx2 v[{10+2*i}:{11+2*i}], v2, s[22:23]\ns_add_u32 s22, s22, {320*8}\ns_addc_u32 s23, s23, 0")
    k("s_waitcnt vmcnt(0)")
    sg = "" if inverse else "-"
    nsg = "-" if inverse else ""
    for i in range(4):
        a, b = 10+2*i, 11+2*i
        k(f"""
        v_cvt_f32_u32 v6, s35
        v_mul_f32 v6, {hex(f2u(1/2048))}, v6
        v_cos_f32 v7, v6
        v_sin_f32 v8, v6
        s_nop 1
        v_fmac_f32 v3, v{a}, v7
        v_fma_f32 v3, {nsg}v8, v{b}, v3
        v_fmac_f32 v4, v{b}, v7
        v_fma_f32 v4, {sg}v8, v{a}, v4
        s_add_u32 s35, s35, s2
        s_and_b32 s35, s35, 2047
        """)
    k(f"""
    s_add_u32 s34, s34, 4
    s_cmp_lt_u32 s34, 2048
    s_cbranch_scc1 LOOP_{name}
    """)
    if not inverse:
        k(f"""
        s_mul_i32 s33, s2, 514
        v_min_u32 v9, 256, v0
        v_lshlrev_b32 v9, 1, v9
        v_add_u32 v9, s33, v9
        global_load_ushort v10, v9, s[6:7]
        global_load_ushort v11, v9, s[8:9]
        s_waitcnt vmcnt(0)
        v_lshlrev_b32 v10, 16, v10
        v_lshlrev_b32 v11, 16, v11
        v_mul_f32 v6, v3, v10
        v_fma_f32 v6, -v4, v11, v6
        v_mul_f32 v7, v3, v11
        v_fmac_f32 v7, v4, v10
        """)
    else:
        k(f"v_mul_f32 v6, {hex(f2u(1/2048))}, v3\nv_mul_f32 v7, {hex(f2u(1/2048))}, v4")
    wsptr(k, 26, dst)
    k(f"""
    s_mul_i32 s33, s2, {320*8}
    v_add_u32 v2, s33, v2
    global_store_dwordx2 v2, v[6:7], s[26:27]
    """)
    end(k)
    return k
k5 = coldft("n5_kernel", Y1, Z, False)
k6 = coldft("n6_kernel", Z, Y2, True)

k7 = Kernel("n7_kernel", 2048, 512)
prologue(k7, 2048)
wsptr(k7, 22, Y2)
k7(f"""
s_mul_i32 s33, s2, {320*8}
s_add_u32 s22, s22, s33
s_addc_u32 s23, s23, 0
s_load_dword s36, s[22:23], 0
s_load_dword s37, s[22:23], {256*8}
v_mov_b32 v3, 0
v_mov_b32 v5, 0      ; d*k2 mod 512
s_mov_b32 s34, 0
LOOP_n7:
s_load_dwordx8 s[44:51], s[22:23], 0
s_waitcnt lgkmcnt(0)
""")
for i in range(4):
    k7(f"""
    v_cvt_f32_u32 v6, v5
    v_mul_f32 v6, {hex(f2u(1/512))}, v6
    v_cos_f32 v7, v6
    v_sin_f32 v8, v6
    s_nop 1
    v_fmac_f32 v3, s{44+2*i}, v7
    v_fma_f32 v3, -v8, s{45+2*i}, v3
    v_add_u32 v5, v5, v0
    v_and_b32 v5, 511, v5
    """)
k7(f"""
s_add_u32 s22, s22, 32
s_addc_u32 s23, s23, 0
s_add_u32 s34, s34, 4
s_cmp_lt_u32 s34, 256
s_cbranch_scc1 LOOP_n7
v_add_f32 v3, v3, v3
v_subrev_f32 v3, s36, v3
v_lshlrev_b32 v6, 31, v0
v_xor_b32 v6, s37, v6
v_add_f32 v3, v3, v6
v_mul_f32 v3, {hex(f2u(1/512))}, v3
""")
rnd_bf16(k7, 3, 4)
wsptr(k7, 26, G)
k7("""
s_lshl_b32 s33, s2, 9
v_add_u32 v1, s33, v0
v_lshlrev_b32 v2, 2, v1
v_lshlrev_b32 v1, 1, v1
global_load_dword v8, v2, s[26:27]
global_load_ushort v9, v1, s[4:5]
s_waitcnt vmcnt(0)
v_lshlrev_b32 v9, 16, v9
v_mul_f32 v3, v3, v8
""")
rnd_bf16(k7, 3, 4)
k7("""
v_add_f32 v3, v3, v9
v_cvt_pk_bf16_f32 v3, v3, v3
global_store_short v1, v3, s[16:17]
""")
end(k7)

ke = Kernel("empty_kernel", 256, 256, vgpr=8)
ke("s_endpgm")

main = [k1, k2, k3, k4, k5, k6, k7]
mode = sys.argv[1]
n = int(sys.argv[2]) if len(sys.argv) > 2 else 0
if mode == "base":
    L = main
elif mode == "pre":
    L = [ke]*n + main
elif mode == "post":
    L = main + [ke]*n
open(sys.argv[3], "w").write(build(L))
```

```python
import re, copy
from asmlib import HEADER

TRANS = ("v_exp_f32", "v_log_f32", "v_rcp_f32", "v_rsq_f32", "v_sqrt_f32", "v_sin_f32", "v_cos_f32")
REG_RE = re.compile(r"^(-|\|)?(?:abs\()?([vas])(?:(\d+)|\[(\d+):(\d+)\])\)?\|?$")

def regs_of(tok):
    tok = tok.strip()
    if tok in ("vcc",): return [("s", 106), ("s", 107)]
    if tok == "vcc_lo": return [("s", 106)]
    if tok == "vcc_hi": return [("s", 107)]
    if tok == "exec_lo": return [("s", 126)]
    if tok == "exec_hi": return [("s", 127)]
    if tok == "exec": return [("s", 126), ("s", 127)]
    if tok == "m0": return [("s", 124)]
    m = REG_RE.match(tok)
    if not m: return []
    k = m.group(2)
    if m.group(3) is not None: return [(k, int(m.group(3)))]
    return [(k, i) for i in range(int(m.group(4)), int(m.group(5)) + 1)]

def split_ops(s):
    out, depth, cur = [], 0, ""
    for ch in s:
        if ch == "[": depth += 1
        if ch == "]": depth -= 1
        if ch == "," and depth == 0:
            out.append(cur.strip()); cur = ""
        else: cur += ch
    if cur.strip(): out.append(cur.strip())
    return out

class Ins:
    __slots__ = ("text", "mn", "cls", "dst", "src", "flags")

def parse(text):
    t = text.split(";")[0].strip()
    sp = t.split(None, 1)
    mn = sp[0]
    rest = sp[1] if len(sp) > 1 else ""
    ops = split_ops(rest)
    flags = []
    if ops:
        parts = ops[-1].split()
        ops[-1] = parts[0]
        flags = parts[1:]
    I = Ins(); I.text = text; I.mn = mn; I.flags = flags
    R = [regs_of(o) for o in ops]
    flat = lambda L: [r for x in L for r in x]
    I.dst, I.src = [], []
    if mn.startswith("v_mfma"):
        I.cls = "mfma"; I.dst = R[0]; I.src = R[1:]
    elif mn.startswith("buffer_load") or mn.startswith("global_load"):
        if "lds" in flags or mn.startswith("global_load_lds"):
            I.cls = "dma"; I.src = flat(R) + [("s", 124)]
        else:
            I.cls = "vload"; I.dst = R[0]; I.src = flat(R[1:])
            if "d16" in mn: I.src += R[0]
    elif mn.startswith("buffer_store") or mn.startswith("global_store") or mn.startswith("buffer_atomic") or mn.startswith("global_atomic"):
        I.cls = "vstore"; I.src = flat(R)
    elif mn.startswith("buffer_wbl2") or mn.startswith("buffer_inv"):
        I.cls = "vstore"
    elif mn.startswith("ds_read") or mn.startswith("ds_bpermute") or mn.startswith("ds_swizzle"):
        I.cls = "dsread"; I.dst = R[0]; I.src = flat(R[1:])
    elif mn.startswith("ds_write") or mn.startswith("ds_add"):
        I.cls = "dswrite"; I.src = flat(R)
    elif mn.startswith("s_load") or mn.startswith("s_memtime") or mn.startswith("s_memrealtime") or mn.startswith("s_buffer_load"):
        I.cls = "smem"; I.dst = R[0]; I.src = flat(R[1:])
    elif mn == "s_waitcnt": I.cls = "wait"
    elif mn == "s_nop": I.cls = "nop"
    elif mn == "s_barrier": I.cls = "barrier"
    elif mn.startswith("s_cbranch") or mn == "s_branch" or mn == "s_endpgm" or mn == "s_setprio" or mn == "s_sleep":
        I.cls = "ctl"
    elif mn.startswith("s_cmp"):
        I.cls = "salu"; I.src = flat(R)
    elif mn.startswith("s_"):
        I.cls = "salu"; I.dst = R[0]; I.src = flat(R[1:])
        if "saveexec" in mn: I.dst = I.dst + [("s", 126), ("s", 127)]
    elif mn.startswith("v_"):
        base = mn.replace("_e32", "").replace("_e64", "").replace("_dpp", "")
        I.cls = "trans" if base in TRANS else "valu"
        if base.startswith("v_permlane") and "swap" in base:
            I.cls = "perm"; I.dst = flat(R); I.src = flat(R)
        elif base.startswith("v_add_co") or base.startswith("v_addc_co") or base.startswith("v_sub_co"):
            I.dst = R[0] + R[1]; I.src = flat(R[2:])
        else:
            I.dst = R[0]; I.src = flat(R[1:])
            if base in ("v_fmac_f32", "v_dot2c_f32_bf16", "v_writelane_b32") : I.src += R[0]
            if base == "v_cndmask_b32" and len(ops) == 3: I.src += regs_of("vcc")
        if "dpp" in mn or any(f.startswith(("quad_perm", "row_", "wave_")) for f in flags): I.flags = flags + ["DPP"]
    else:
        raise ValueError("unknown instruction: " + text)
    return I

class State:
    def __init__(self):
        self.t = 0
        self.w = {}
        self.mfma_c = {}
        self.mfma_d = {}
        self.st = {}
        self.vm = []
        self.lg = []
        self.smem = []
        self.issued = set()
        self.dot = {}

class Prog:
    def __init__(self, name, grid, block, lds=0, vgpr=256, sgpr=100, agpr=0):
        self.name, self.grid, self.block, self.lds = name, grid, block, lds
        self.vgpr, self.sgpr, self.agpr = vgpr, sgpr, agpr
        self.lines = []
        self.S = State()
        self.nlab = 0
        self.maxv = -1; self.maxa = -1; self.maxs = -1
        self.stats = {"nop": 0, "ins": 0}
    def raw(self, s): self.lines.append(s)
    def label(self, l): self.lines.append(l + ":")
    def newlabel(self, b="L"):
        self.nlab += 1; return f"{b}{self.nlab}_{self.name}"
    def snapshot(self): return copy.deepcopy(self.S)
    def restore(self, s): self.S = copy.deepcopy(s)
    def _out(self, text, states=1):
        self.lines.append("    " + text); self.S.t += states; self.stats["ins"] += 1
    def nop(self, n):
        while n > 0:
            k = min(n, 16); self._out(f"s_nop {k-1}", k); n -= k; self.stats["nop"] += 1
    def wait_vm(self, tag=None, n=None):
        S = self.S
        if tag is not None:
            assert tag in S.issued, f"wait for a never issued op {tag}"
            idx = [i for i, (t, _) in enumerate(S.vm) if t == tag]
            if not idx: return
            n = len(S.vm) - 1 - idx[-1]
        elif n is None: n = 0
        if n >= len(S.vm): return
        assert n <= 63
        self._out(f"s_waitcnt vmcnt({n})")
        S.vm = S.vm[len(S.vm) - n:] if n else []
    def wait_lg(self, tag=None, n=None):
        S = self.S
        if S.smem:
            self._out("s_waitcnt lgkmcnt(0)"); S.lg = []; S.smem = []; return
        if tag is not None:
            idx = [i for i, (t, _) in enumerate(S.lg) if t == tag]
            if not idx: return
            n = len(S.lg) - 1 - idx[-1]
        elif n is None: n = 0
        if n >= len(S.lg): return
        n = min(n, 15)
        self._out(f"s_waitcnt lgkmcnt({n})")
        S.lg = S.lg[len(S.lg) - n:] if n else []
    def barrier(self):
        self._out("s_barrier")
    def __call__(self, s, tag=None):
        for ln in s.strip("\n").split("\n"):
            ln = ln.strip()
            if not ln or ln.startswith(";"): continue
            if ln.endswith(":"): self.label(ln[:-1]); continue
            self.ins(ln, tag)
    def ins(self, text, tag=None):
        I = parse(text); S = self.S
        src = [r for x in I.src for r in x] if I.cls == "mfma" else I.src
        touched = set(src) | set(I.dst)
        for (k, i) in touched:
            if k == "v": self.maxv = max(self.maxv, i)
            elif k == "a": self.maxa = max(self.maxa, i)
            elif i < 102: self.maxs = max(self.maxs, i)
        if I.cls == "wait": raise ValueError("use wait_vm/wait_lg")
        if I.cls == "nop": self._out(text, int(text.split()[1]) + 1); return
        need = None
        for i, (t, d) in enumerate(S.vm):
            if d and touched & d: need = i
        if need is not None: self.wait_vm(n=len(S.vm) - 1 - need)
        need = None
        for i, (t, d) in enumerate(S.lg):
            if d and touched & d: need = i
        if S.smem and touched & set(S.smem): self.wait_lg()
        elif need is not None: self.wait_lg(n=len(S.lg) - 1 - need)
        if I.cls in ("dsread", "dswrite") and len(S.lg) >= 15: self.wait_lg(n=14)
        req = 0
        def after(t, n):
            nonlocal req
            req = max(req, t + 1 + n)
        isvalu = I.cls in ("valu", "trans", "perm")
        ismem = I.cls in ("vload", "vstore", "dma", "dsread", "dswrite")
        if I.cls == "mfma":
            D = tuple(I.dst); C = tuple(I.src[2]) if len(I.src) > 2 else ()
            for idx, op in enumerate(I.src):
                for r in op:
                    if r in S.w and S.w[r][1] in ("valu", "trans"): after(S.w[r][0], 2)
                    if r in S.mfma_d:
                        t, d = S.mfma_d[r]
                        if idx == 2: after(t, 0 if d == C else 6)
                        else: after(t, 8)
            for r in D:
                if r in S.mfma_d and S.mfma_d[r][1] != C: after(S.mfma_d[r][0], 8)
            if ("s", 126) in S.w and S.w[("s", 126)][1] in ("valu",): after(S.w[("s", 126)][0], 4)
        else:
            for r in touched:
                if r in S.mfma_d and (isvalu or ismem): after(S.mfma_d[r][0], 8)
            if isvalu:
                for r in touched:
                    if r in S.dot and S.dot[r][1] != I.mn and S.w.get(r, (None,))[0] == S.dot[r][0]: after(S.dot[r][0], 3)
                for r in I.dst:
                    if r in S.mfma_c: after(S.mfma_c[r], 3)
                    if r in S.st: after(S.st[r], 2)
                for r in src:
                    if r in S.w:
                        t, k = S.w[r]
                        if k == "trans" and I.cls != "trans": after(t, 1)
                        if k in ("valu", "trans") and r[0] == "s": after(t, 2 if not I.mn.startswith(("v_readlane", "v_writelane")) else 4)
                        if k in ("valu", "trans") and r[0] != "s":
                            if I.cls == "perm" or "DPP" in I.flags: after(t, 2)
                            if I.mn.startswith(("v_readfirstlane", "v_readlane")): after(t, 1)
            if I.cls in ("vload", "dsread"):
                for r in I.dst:
                    if r in S.st: after(S.st[r], 1)
            if ismem:
                for r in src:
                    if r in S.w:
                        t, k = S.w[r]
                        if r[0] == "s" and k in ("valu", "trans") and I.cls in ("vload", "vstore", "dma"): after(t, 5)
                        if r == ("s", 124) and k == "salu" and I.cls == "dma": after(t, 1)
            if I.cls == "salu":
                for r in src:
                    if r in S.w and S.w[r][1] in ("valu", "trans"): after(S.w[r][0], 3)
        if req > S.t: self.nop(req - S.t)
        now = S.t
        self._out(text)
        if I.cls == "mfma":
            for r in I.dst:
                S.mfma_d[r] = (now, tuple(I.dst)); S.w.pop(r, None)
            if len(I.src) > 2:
                for r in I.src[2]: S.mfma_c[r] = now
        else:
            kind = {"valu": "valu", "perm": "valu", "trans": "trans", "salu": "salu"}.get(I.cls)
            for r in I.dst:
                S.mfma_d.pop(r, None)
                if kind: S.w[r] = (now, kind)
                else: S.w.pop(r, None)
        if I.mn.startswith("v_dot"):
            for r in I.dst: S.dot[r] = (now, I.mn)
        if I.cls == "vstore" and ("x3" in I.mn or "x4" in I.mn):
            for r in src:
                if r[0] != "s": S.st[r] = now
        if I.cls in ("vload", "vstore", "dma"):
            S.vm.append((tag, set(I.dst) if I.cls == "vload" else None))
            S.issued.add(tag)
            assert len(S.vm) <= 63, "more than 63 vmem ops possibly outstanding"
        if I.cls in ("dsread", "dswrite"):
            S.lg.append((tag, set(I.dst) if I.cls == "dsread" else None))
        if I.cls == "smem": S.smem += I.dst
    def text(self):
        return "\n".join([f".globl {self.name}", ".p2align 8", f".type {self.name},@function", f"{self.name}:"] + self.lines) + "\n"
    def desc(self):
        nv = self.maxv + 1
        acc = (nv + 3) // 4 * 4
        nfv = acc + self.maxa + 1 if self.maxa >= 0 else nv
        assert nv <= 256 and nfv <= 512, (nv, nfv)
        assert nfv <= self.vgpr, f"{self.name}: needs {nfv} regs > budget {self.vgpr}"
        return f""".p2align 6
.amdhsa_kernel {self.name}
  .amdhsa_next_free_vgpr {nfv}
  .amdhsa_next_free_sgpr {max(self.maxs + 1, 16)}
  .amdhsa_accum_offset {acc}
  .amdhsa_group_segment_fixed_size 0
  .amdhsa_kernarg_size 72
  .amdhsa_user_sgpr_count 2
  .amdhsa_user_sgpr_kernarg_segment_ptr 1
  .amdhsa_system_sgpr_workgroup_id_x 1
.end_amdhsa_kernel
"""

def build(launches, rodata=""):
    s = HEADER
    for k in launches:
        s += f"; @launch kernel={k.name} grid=({k.grid},1,1) block=({k.block},1,1) lds={k.lds}\n"
    s += '.amdgcn_target "amdgcn-amd-amdhsa--gfx950"\n.text\n'
    seen = []
    for k in launches:
        if k not in seen: seen.append(k)
    for k in seen: s += k.text()
    s += 'CODE_END:\n'
    s += '.section .rodata,"a"\n'
    for k in seen: s += k.desc()
    s += rodata
    return s
```

```python
import struct, re
from emit import *
from model import WS_H, WS_Y1, WS_WT, WS_Y2, WS_G, WS_W2P
def f2u(x): return struct.unpack("<I", struct.pack("<f", x))[0]
def fx(x): return hex(f2u(x))
LOG2E = 1.4426950408889634

def prologue(k, nblk):
    k(f"""
    s_cmp_ge_u32 s2, {nblk}
    s_cbranch_scc1 END_{k.name}
    s_load_dwordx16 s[4:19], s[0:1], 0
    s_load_dwordx2 s[20:21], s[0:1], 64
    """)
def srd(k, d, lo, hi, size, add=None):
    if add is None:
        k(f"s_mov_b32 s{d}, s{lo}\ns_mov_b32 s{d+1}, s{hi}")
    else:
        k(f"s_add_u32 s{d}, s{lo}, {add}\ns_addc_u32 s{d+1}, s{hi}, 0")
    k(f"s_mov_b32 s{d+2}, {size}\ns_mov_b32 s{d+3}, 0x20000")
def srd_table(k, d, sym, size):
    k(f"s_getpc_b64 s[{d}:{d+1}]")
    k(f"s_add_u32 s{d}, s{d}, {sym}@rel32@lo+4")
    k(f"s_addc_u32 s{d+1}, s{d+1}, {sym}@rel32@hi+12")
    k(f"s_mov_b32 s{d+2}, {size}\ns_mov_b32 s{d+3}, 0x20000")

STAMP = 0x8000000
class Stamps:
    def __init__(self, k, on, slot, vbase): self.k, self.on, self.slot, self.n, self.vb = k, on, slot, 0, vbase
    def reset(self, n): self.n = n
    def mark(self, name=None):
        if not self.on: return
        if name is not None and (not isinstance(self.on, list) or name not in self.on): return
        if name is None and isinstance(self.on, list) and "front" in self.on and self.n > 0 and not getattr(self, "fl", 0): return
        k = self.k
        k("s_memrealtime s[100:101]" if False else "s_memrealtime s[22:23]")
        if getattr(k, 'clk', 0): k("s_memtime s[100:101]" if False else "s_memtime s[90:91]" if False else "s_memtime s[0:1]")
        k.wait_lg()
        if getattr(k, "allw", 0): k(f"s_mov_b32 s{4 + self.n}, s22")
        else: k(f"v_mov_b32 v{self.vb + self.n}, s22")
        if getattr(k, 'clk', 0): k(f"v_mov_b32 v255, s0\nv_accvgpr_write_b32 a{200 + self.n}, v255")
        self.n += 1
    def flush(self, who):
        if not self.on: return
        k = self.k
        k._out('s_waitcnt vmcnt(0)'); k.S.vm = []
        self.fl = 1; self.mark(); self.fl = 0
        L = k.newlabel("NOST")
        if getattr(k, "allw", 0):
            self.vb = 20
            for i in range(self.n): k(f"v_mov_b32 v{20+i}, s{4+i}")
        if getattr(k, "allw", 0):
            k(f"s_lshl_b32 s22, s2, 3\ns_add_u32 s22, s22, s3\ns_lshl_b32 s22, s22, 6\ns_add_u32 s22, s22, {STAMP + 65536}\nv_mov_b32 v1, s22")
            for i in range(self.n): k(f"global_store_dword v1, v{self.vb+i}, s[20:21] offset:{4*i}")
        k(f"s_cmp_lg_u32 s3, {who}\ns_cbranch_scc1 {L}")
        k(f"s_lshl_b32 s22, s2, 6\ns_add_u32 s22, s22, {STAMP + self.slot*16384}\nv_mov_b32 v1, s22")
        for i in range(self.n): k(f"global_store_dword v1, v{self.vb+i}, s[20:21] offset:{4*i}")
        if getattr(k, 'clk', 0):
            for i in range(self.n): k(f"global_store_dword v1, a{200+i}, s[20:21] offset:{32+4*i}")
        k.label(L)

def vr(a, n=4): return f"v[{a}:{a+n-1}]"
def ar(a, n=4): return f"a[{a}:{a+n-1}]"

class Merge:
    def __init__(self): self.q = []
    def add(self, *ins): self.q += list(ins)
    def pop(self, k, n):
        for _ in range(n):
            if not self.q: return
            it = self.q.pop(0)
            if callable(it): it()
            else: k(it)
    def flush(self, k): self.pop(k, len(self.q))


K1_LDS = 163840
FAR = "0x40000000"

def mfma(k, d, a, b, first=False):
    k(f"v_mfma_f32_16x16x32_bf16 {d}, {a}, {b}, {'0' if first else d}")

def build_k1(opt):
    k = Prog("k1_kernel", 256, 512, lds=K1_LDS, vgpr=256)
    k.stamps = Stamps(k, opt.get("stamps"), 0, 248)
    k.allw = 1
    k(f"""
    s_cmpk_ge_u32 s2, 256
    s_cbranch_scc1 END_{k.name}
    s_load_dwordx2 s[24:25], s[0:1], 0
    s_load_dwordx2 s[28:29], s[0:1], 32
    s_load_dwordx2 s[36:37], s[0:1], 64
    s_load_dwordx2 s[44:45], s[0:1], 8
    s_load_dwordx2 s[48:49], s[0:1], 16
    s_load_dwordx2 s[40:41], s[0:1], 40
    """)
    if opt.get("stamps"): k("s_load_dwordx2 s[20:21], s[0:1], 64")
    k(f"""
    v_lshrrev_b32 v4, 6, v0
    v_and_b32 v1, 63, v0
    v_readfirstlane_b32 s3, v4
    v_lshrrev_b32 v2, 4, v1
    v_and_b32 v3, 15, v0
    v_and_b32 v21, 3, v0
    v_lshlrev_b32 v46, 4, v1
    s_lshr_b32 s59, s2, 6
    s_bfe_u32 s58, s2, 0x20001
    s_lshl2_add_u32 s58, s58, s59
    s_bfe_u32 s60, s2, 0x30003
    s_and_b32 s56, s2, 1
    s_mov_b32 s38, 0x1200000
    s_mov_b32 s39, 0x20000
    s_and_b32 s55, s3, 3
    """)
    k.stamps.mark()
    k(f"s_cmp_lt_u32 s3, 4\ns_cbranch_scc1 K1_MMA")
    snap = k.snapshot()
    k("s_cmp_ge_u32 s3, 6\ns_cbranch_scc1 K1_STAT")
    loader(k, opt)
    k("s_endpgm")
    k.label("K1_STAT"); k.restore(snap)
    stat_worker(k, opt)
    k("s_endpgm")
    k.label("K1_MMA"); k.restore(snap)
    k("s_cmp_eq_u32 s60, 7\ns_cbranch_scc1 K1_FM")
    snap2 = k.snapshot()
    mma_h(k, opt)
    k("s_endpgm")
    k.label("K1_FM"); k.restore(snap2)
    mma_f(k, opt)
    k.label(f"END_{k.name}")
    k("s_endpgm")
    return k

SC = 131072
SC_PART = SC + 16384

def loader(k, opt):
    k.stamps.reset(1)
    k(f"""
    s_and_b32 s54, s3, 1
    v_and_b32 v22, 7, v0
    v_and_b32 v23, 24, v0
    v_lshlrev_b32 v20, 13, v23
    v_and_b32 v23, 32, v0
    v_lshl_or_b32 v20, v23, 5, v20
    v_xor_b32 v23, v22, v2
    v_lshl_or_b32 v4, v23, 4, v20
    v_xor_b32 v5, 64, v4
    v_add_u32 v5, 0x400, v5
    v_add_u32 v6, 0xff800, v4
    v_add_u32 v7, 0xff800, v5
    s_lshl_b32 s81, s58, 12
    s_lshl_b32 s63, s54, 19
    s_add_u32 s81, s81, s63
    s_mov_b32 s26, 0x200000
    s_mov_b32 s27, 0x20000
    s_mov_b32 s31, 0x20000
    s_lshl_b32 s73, s54, 13
    s_movk_i32 s57, 0x3ff
    s_mov_b32 s72, 0x1ffff
    s_mov_b32 s78, 0
    s_cmp_eq_u32 s60, 7
    s_cbranch_scc1 K1_LF
    """)
    snap = k.snapshot()
    for ty in "HF":
        H = ty == "H"
        if H:
            k(f"""
            v_lshrrev_b32 v27, 3, v1
            v_mul_u32_u24 v40, 0xe00, v27
            v_lshrrev_b32 v26, 3, v0
            v_and_b32 v26, 2, v26
            v_xor_b32 v26, v22, v26
            v_lshl_add_u32 v40, v26, 4, v40
            v_add_u32 v41, {32*3584 - 1024}, v40
            v_xor_b32 v42, 64, v40
            v_add_u32 v42, {8*3584 - 2048}, v42
            v_add_u32 v43, {32*3584 - 1024}, v42
            s_add_u32 s76, s59, s60
            s_and_b32 s76, s76, {0 if opt.get("k1_norot") else 3}
            s_lshl_b32 s76, s76, 8
            s_mul_i32 s70, s56, 7
            s_add_u32 s70, s60, s70
            s_lshl1_add_u32 s70, s70, s54
            s_lshl_b32 s70, s70, 7
            s_mov_b32 s30, 1835008
            """)
            k.wait_lg()
        else:
            k.label("K1_LF"); k.restore(snap)
            k(f"s_lshl_b32 s76, s59, 8\ns_lshl_b32 s70, s56, 17\ns_add_u32 s70, s70, s73")
            k.wait_lg()
            k(f"s_getpc_b64 s[28:29]\ns_add_u32 s28, s28, FB2@rel32@lo+4\ns_addc_u32 s29, s29, FB2@rel32@hi+12\ns_mov_b32 s30, 0x40000")
        def stage_x():
            if opt.get("x_nodma"): return
            if H: k("s_add_u32 s83, s76, s81\ns_mul_i32 s79, s76, 1792\ns_mov_b32 m0, s73")
            else: k("s_lshr_b32 s83, s76, 1\ns_and_b32 s83, s83, 0x180\ns_and_b32 s79, s76, 0x80\ns_lshl2_add_u32 s83, s79, s83\ns_add_u32 s83, s83, s81\ns_lshl_b32 s79, s76, 7\ns_mov_b32 m0, s73")
            k("s_add_u32 s79, s79, s70")
            for r in range(2):
                if r: k("s_add_u32 m0, s73, 0x1000\ns_add_u32 s83, s83, 0x40000")
                for i in range(4): k(f"buffer_load_dwordx4 v{4+i}, s[24:27], s83 offen offset:{1024*i} lds")
        def stage_w():
            if opt.get("x_nodma"): return
            for r in range(2):
                k(f"s_add_u32 m0, s73, {0x4000 + 0x1000*r}")
                if r: k(f"s_add_u32 s79, s79, {16*3584 if H else 4096}")
                else: k("s_addk_i32 s76, 128")
                for i in range(4): k(f"buffer_load_dwordx4 v{[40, 41, 42, 43][i] if H else 46}, s[28:31], s79 offen offset:{1024*i} lds")
            k("s_and_b32 s76, s76, s57\ns_add_u32 s73, s73, 0x8000\ns_and_b32 s73, s73, s72")
        stage_x(); stage_w(); stage_x()
        k._out("s_waitcnt vmcnt(8)"); k.S.vm = []
        k.barrier()
        stage_w()
        k.label(f"K1L_LOOP{ty}")
        stage_x(); stage_w()
        k._out(f"s_waitcnt vmcnt(16)"); k.S.vm = []
        k(f"s_add_u32 s78, s78, 1\ns_cmp_lt_u32 s78, 6")
        k.barrier()
        k(f"s_cbranch_scc1 K1L_LOOP{ty}")
        if H: k("s_branch K1L_TAIL")
    k.label("K1L_TAIL")
    k.stamps.mark()
    J = 52
    k(f"s_lshl1_add_u32 s55, s54, 0")
    jobs_setup(k, 0)
    jobs_loads(k, J, 0)
    k._out(f"s_waitcnt vmcnt(4)"); k.barrier()
    k(f"s_lshl1_add_u32 s55, s54, 1")
    jobs_setup(k, 1)
    jobs_loads(k, J + 16, 1)
    if opt.get("pf_code", 1):
        k("s_getpc_b64 s[22:23]")
        lab = k.newlabel("PC"); k.label(lab)
        k(f"s_and_b32 s63, s2, 0xf8\nv_min_u32 v26, 7, v1\nv_add_lshl_u32 v26, v26, s63, 7\ns_add_u32 s22, s22, k2_kernel-{lab}\ns_addc_u32 s23, s23, 0")
        k(f"v_min_u32 v26, CODE_END-k2_kernel-4, v26\nglobal_load_dword v8, v26, s[22:23]")
    k.barrier()
    k.barrier()
    k.stamps.mark()
    for u in range(2): jobs_finish(k, opt, J + 16*u, u)
    k.stamps.mark()
    k.stamps.n = 4
    k.stamps.flush(9)

def stat_worker(k, opt):
    k.stamps.reset(1)
    TM = 20
    k(f"s_and_b32 s54, s3, 1\ns_lshl_b32 s63, s54, 6\nv_add_u32 v25, s63, v1\nv_lshlrev_b32 v26, 3, v25\nv_add_u32 v26, {SC}, v26\nv_lshlrev_b32 v27, 2, v25\nv_add_u32 v27, {SC + 1024}, v27")
    if opt.get("pf_code", 1):
        k("s_getpc_b64 s[22:23]")
        lab = k.newlabel("PC"); k.label(lab)
        k(f"s_and_b32 s63, s2, 0xf8\nv_min_u32 v8, 7, v1\nv_add_lshl_u32 v8, v8, s63, 6\nv_and_b32 v8, 0xffffff80, v8\ns_add_u32 s22, s22, k1_kernel-{lab}\ns_addc_u32 s23, s23, -1")
        k(f"v_lshl_add_u32 v8, s54, 14, v8\nv_min_u32 v8, CODE_END-k1_kernel-4, v8\nglobal_load_dword v9, v8, s[22:23]")
        k.S.vm = []
    k(f"v_mov_b32 v{TM}, 0\nv_mov_b32 v{TM+1}, 0\nds_write_b64 v26, {vr(TM, 2)} offset:{SC_PART - SC + 1024}")
    k.wait_lg()
    for i in range(9): k.barrier()
    for nc in range(2): k(f"ds_read_b64 {vr(TM + 2*nc, 2)}, v26 offset:{SC_PART - SC + 1024*nc}")
    for e in range(2): k(f"v_add_f32 v{TM+e}, v{TM+e}, v{TM+2+e}")
    stats_math(k, [(TM, TM+1)], lambda i: (TM + 2, TM + 4))
    k(f"v_mul_f32 v{TM+3}, {fx(-LOG2E)}, v{TM+4}\nds_write_b32 v27, v{TM+4}\nds_write_b64 v26, {vr(TM+2, 2)}")
    k.wait_lg(); k.barrier()

def stats_publish(SUM, GRAM, T, nt):
    o = []
    for t in range(nt): o += [f"v_cndmask_b32 v{T+2*t+1}, v{GRAM+4*t}, v{GRAM+4*t+1}, s[94:95]", f"v_mov_b32 v{T+2*t}, v{SUM+4*t}"]
    for t in range(nt): o += [f"v_cndmask_b32 v{T+2*t+1}, v{T+2*t+1}, v{GRAM+4*t+2}, s[96:97]"]
    for t in range(nt): o += [f"v_cndmask_b32 v{T+2*t+1}, v{T+2*t+1}, v{GRAM+4*t+3}, s[98:99]"]
    o += [f"ds_write_b64 v13, {vr(T+2*t, 2)} offset:{128*t}" for t in range(nt)]
    return o
def stats_setup(k, ONES):
    k(f"v_cmp_eq_u32 s[94:95], 1, v21\nv_cmp_eq_u32 s[96:97], 2, v21\nv_cmp_eq_u32 s[98:99], 3, v21")
    k(f"s_mov_b32 vcc_lo, 0x00f0000f\ns_mov_b32 vcc_hi, 0xf0000f00\ns_add_u32 s63, s63, {SC_PART}\nv_lshl_add_u32 v13, v3, 3, s63")
    k(f"v_lshlrev_b32 v27, 3, v1\nv_add_u32 v27, {SC_PART + 2048}, v27\nv_cndmask_b32 v13, v27, v13, vcc")
    k(f"v_mov_b32 v{ONES}, 0x3f803f80")
    for i in range(1, 4): k(f"v_mov_b32 v{ONES+i}, v{ONES}")

def jobs_setup(k, u):
    k(f"""
    s_lshl2_add_u32 s63, s2, s55
    s_and_b32 s69, s63, 7
    s_lshr_b32 s63, s63, 3
    s_and_b32 s64, s63, 3
    s_and_b32 s65, s63, 12
    s_lshl4_add_u32 s64, s65, s64
    s_and_b32 s65, s63, 32
    s_lshl3_add_u32 s64, s65, s64
    s_lshr_b32 s65, s63, 6
    s_lshl3_add_u32 s64, s65, s64
    s_and_b32 s65, s63, 16
    s_lshl2_add_u32 s64, s64, s65
    s_mulk_i32 s64, 257
    s_lshl4_add_u32 s64, s69, s64
    s_lshl4_add_u32 s64, s69, s64
    s_lshl_b32 s64, s64, 1
    s_add_u32 s64, s64, 2
    s_lshl_b32 s69, s69, 12
    s_add_u32 s69, s69, s63
    s_lshl_b32 s69, s69, 6
    s_add_u32 s{84+4*u}, s69, {WS_WT}
    s_add_u32 s{85+4*u}, s{84+4*u}, 0x20000
    s_lshr_b32 s65, s2, 2
    s_and_b32 s66, s2, 3
    s_lshl2_add_u32 s67, s66, s55
    s_lshl_b32 s67, s67, 6
    s_lshl_b32 s63, s65, 15
    s_add_u32 s67, s67, s63
    s_mul_i32 s66, s66, 56
    s_add_u32 s66, s66, s65
    s_lshl2_add_u32 s66, s66, s55
    s_lshl_b32 s66, s66, 11
    s_add_u32 s66, s66, {WS_W2P}
    s_cmpk_lt_u32 s2, 224
    s_cselect_b32 s{86+4*u}, s66, {FAR}
    s_add_u32 s65, s67, 0x4000
    """)
    if u: return
    k(f"""
    s_mov_b32 s46, 1052672
    s_mov_b32 s47, 0x20000
    s_mov_b32 s50, 1052672
    s_mov_b32 s51, 0x20000
    s_mov_b32 s42, 1835008
    s_mov_b32 s43, 0x20000
    s_lshl_b32 s53, s54, 11
    s_add_u32 s53, s53, {SC + 2048}
    v_bfe_u32 v24, v0, 2, 2
    v_lshl_add_u32 v32, v24, 6, v2
    v_mul_u32_u24 v32, 514, v32
    v_lshl_add_u32 v32, v21, 4, v32
    v_lshrrev_b32 v12, 2, v1
    v_lshlrev_b32 v33, 10, v12
    v_lshl_add_u32 v33, v21, 4, v33
    v_add_u32 v39, s53, v46
    v_lshlrev_b32 v37, 6, v12
    v_lshl_add_u32 v37, v21, 3, v37
    v_add_u32 v37, s53, v37
    v_lshl_add_u32 v38, v2, 8, v37
    v_lshlrev_b32 v27, 4, v2
    v_lshl_add_u32 v27, v3, 6, v27
    v_add_u32 v27, s53, v27
    v_lshlrev_b32 v36, 13, v12
    v_lshl_add_u32 v36, v21, 4, v36
    """)
def jobs_loads(k, J, u):
    k(f"buffer_load_dwordx4 {vr(J)}, v32, s[44:47], s64 offen\nbuffer_load_dwordx4 {vr(J + 4)}, v32, s[48:51], s64 offen")
    k(f"buffer_load_dwordx4 {vr(J + 8)}, v33, s[40:43], s67 offen\nbuffer_load_dwordx4 {vr(J + 12)}, v33, s[40:43], s65 offen")
def jobs_finish(k, opt, J, u):
    SW = opt.get('k1_storew', 'sc1')
    for pl in range(2): k(f"ds_write_b128 v39, {vr(J + 4*pl)} offset:{1024*pl}")
    for ch in range(2):
        k(f"ds_read_b64_tr_b16 {vr(J + 4*ch, 2)}, v37 offset:{32*ch}\nds_read_b64_tr_b16 {vr(J + 2 + 4*ch, 2)}, v37 offset:{32*ch + 1024}")
    for ch in range(2): k(f"ds_write_b128 v27, {vr(J + 4*ch)} offset:{1024*ch}")
    for e in range(2): k(f"ds_read_b128 {vr(J + 4*e)}, v39 offset:{1024*e}")
    for pl in range(2): k(f"ds_write_b128 v39, {vr(J + 8 + 4*pl)} offset:{1024*pl}")
    for ch in range(2):
        k(f"ds_read_b64_tr_b16 {vr(J + 8 + 4*ch, 2)}, v38 offset:{32*ch}\nds_read_b64_tr_b16 {vr(J + 10 + 4*ch, 2)}, v38 offset:{32*ch + 256}")
    for e in range(2): k(f"buffer_store_dwordx4 {vr(J + 4*e)}, v36, s[36:39], s{84+4*u+e} offen {SW}")
    for e in range(2): k(f"buffer_store_dwordx4 {vr(J + 8 + 4*e)}, v46, s[36:39], s{86+4*u} offen offset:{1024*e} {SW}")

def stats_math(k, regs, outs):
    k(f"s_mov_b32 s92, {fx(1/512)}\ns_mov_b32 s93, 0xffff0000\ns_mov_b32 s91, {fx(1e-5)}")
    seq = ["v_mul_f32 v{S}, s92, v{S}", "v_mul_f32 v{G}, s92, v{G}", "v_fma_f32 v{G}, -v{S}, v{S}, v{G}", "v_max_f32 v{G}, 0, v{G}",
           "v_cvt_pk_bf16_f32 v{G}, v{G}, -v{S}", "NM", "v_lshlrev_b32 v{G}, 16, v{G}", "v_add_f32 v{G}, s91, v{G}",
           "v_cvt_pk_bf16_f32 v{G}, v{G}, v{G}", "v_lshlrev_b32 v{G}, 16, v{G}", "v_sqrt_f32 v{G}, v{G}",
           "v_cvt_pk_bf16_f32 v{G}, v{G}, v{G}", "v_lshlrev_b32 v{G}, 16, v{G}", "v_rcp_f32 v{R}, v{G}"]
    for ins in seq:
        for i, (S, G) in enumerate(regs):
            nm, rr = outs(i)
            if ins == "NM":
                if nm is not None: k(f"v_and_b32 v{nm}, s93, v{G}")
            else: k(ins.format(S=S, G=G, R=rr))

def xread_addr(k):
    k("""
    s_and_b32 s54, s3, 1
    s_lshr_b32 s55, s3, 1
    s_lshl_b32 s74, s54, 13
    v_lshrrev_b32 v23, 1, v3
    v_xor_b32 v23, v23, v2
    v_lshl_add_u32 v20, v3, 7, s74
    v_lshl_add_u32 v44, v23, 4, v20
    v_xor_b32 v45, 64, v44
    """)

def mma_h(k, opt):
    ST = opt.get("k1_store", "sc1")
    k.stamps.reset(1)
    XF, BF, ACC, CSA, SUM, GRAM, ONES, REC, T = 52, 84, 116, 180, 188, 204, 220, 224, 232
    CS = 52
    xread_addr(k)
    k(f"""
    v_bfe_u32 v24, v0, 2, 2
    v_lshlrev_b32 v23, 11, v2
    v_lshl_add_u32 v23, v24, 7, v23
    v_lshl_add_u32 v23, v21, 3, v23
    s_mul_i32 s63, s55, 0x2400
    s_addk_i32 s63, 0x4000
    v_add_u32 v23, s63, v23
    s_lshl_b32 s63, s55, 6
    v_xor_b32 v44, s63, v44
    v_xor_b32 v45, s63, v45
    s_movk_i32 s79, 0x400
    v_bfe_u32 v26, v0, 3, 2
    s_lshl_b32 s61, s55, 8
    s_add_u32 s61, s61, {SC + 1536}
    v_lshl_add_u32 v28, v2, 4, s61
    s_lshl_b32 s62, s54, 1
    """)
    for c in range(4):
        k(f"s_xor_b32 s78, s62, {c}\nv_xor_b32 v27, s78, v26\nv_lshl_add_u32 v{4+c}, v27, 5, v23\nv_xor_b32 v{8+c}, s79, v{4+c}")
        k(f"s_mul_i32 s77, s78, 0x1200\ns_and_b32 s{84+c}, s77, 0x2200\ns_add_u32 s{88+c}, s{84+c}, {56*8192}")
        if c % 2 == 0: k(f"v_lshl_add_u32 v{48+c//2}, s78, 6, v28")
    k("s_lshl1_add_u32 s63, s55, s54\ns_lshl_b32 s63, s63, 9")
    stats_setup(k, ONES)
    for i in range(ACC, GRAM + 16): k(f"v_mov_b32 v{i}, 0")
    k(f"""
    v_and_b32 v18, 16, v0
    v_lshlrev_b32 v18, 8, v18
    v_and_b32 v26, 32, v0
    v_lshl_or_b32 v18, v26, 3, v18
    v_lshl_or_b32 v18, v3, 4, v18
    s_mul_i32 s70, s56, 7
    s_add_u32 s60, s60, s70
    s_and_b32 s63, s58, 12
    s_add_u32 s63, s63, s62
    s_mul_i32 s63, s63, 28
    s_lshl1_add_u32 s63, s60, s63
    s_add_u32 s63, s63, s55
    s_and_b32 s62, s58, 3
    s_lshl4_add_u32 s63, s63, s62
    s_lshl_b32 s63, s63, 10
    v_add_u32 v18, s63, v18
    s_lshl_b32 s63, s54, 9
    s_add_u32 s63, s63, {SC}
    v_lshl_add_u32 v17, v3, 3, s63
    s_mov_b32 s77, 0x10000
    s_mov_b32 s78, 0
    """)
    def rd(h, odd):
        o = [f"ds_read_b128 {vr(XF + 16*h + 4*t)}, v{44+h} offset:{2048*t + 32768*odd}" for t in range(4)]
        for c in range(4):
            d = BF + 16*h + 4*c
            o += [f"ds_read_b64_tr_b16 {vr(d, 2)}, v{4+4*h+c} offset:{32768*odd}", f"ds_read_b64_tr_b16 {vr(d+2, 2)}, v{4+4*h+c} offset:{512 + 32768*odd}"]
        if opt.get("x_noread"): return []
        return [o[0], o[4], o[5], o[1], o[2], o[3]] + o[6:]
    def mm(h, fill):
        seq = [(ACC + 16*c + 4*t, BF + 16*h + 4*c, XF + 16*h + 4*t) for c in range(4) for t in range(4)]
        seq += [(CSA + 4*c, BF + 16*h + 4*c, ONES) for c in range(2)]
        if h == 0:
            st = []
            for t in range(4): st += [(SUM + 4*t, ONES, XF + 4*t), (GRAM + 4*t, XF + 4*t, XF + 4*t)]
            seq = seq[:4] + st + seq[4:]
        for n, (d, a, b) in enumerate(seq):
            if not opt.get("x_nomfma"): mfma(k, vr(d), vr(a), vr(b))
            fill.pop(k, 1 if n < 17 else 2)
        fill.flush(k)
    k.stamps.mark()
    k.wait_lg()
    k.barrier()
    if opt.get("stamps") == 3:
        k._out("s_memtime s[14:15]"); k._out("s_memrealtime s[16:17]"); k._out("s_waitcnt lgkmcnt(0)")
    for i in rd(0, 0): k(i)
    k.label("K1H_LOOP")
    f = Merge()
    for odd in range(2):
        if odd:
            xa = [f"v_xor_b32 v{x}, s77, v{x}" for x in (44, 4, 5, 6, 7)]
            xb = [f"v_xor_b32 v{x}, s77, v{x}" for x in (45, 8, 9, 10, 11)]
            r = rd(1, odd)
            f.add(*[a + "\n" + b for a, b in zip(r[:5], xa)], *r[5:], *xb, *stats_publish(SUM, GRAM, T, 4))
        else: f.add(*rd(1, odd))
        mm(0, f)
        k.wait_lg(); k.barrier()
        f.add(*rd(0, 1 - odd))
        if odd: f.add("s_add_u32 s78, s78, 1\ns_cmp_lt_u32 s78, 4")
        mm(1, f)
    k("s_cbranch_scc1 K1H_LOOP")
    if opt.get("stamps") == 3:
        k._out("s_memtime s[10:11]"); k._out("s_memrealtime s[12:13]"); k._out("s_waitcnt lgkmcnt(0)")
        k._out("s_sub_u32 s10, s10, s14"); k._out("s_sub_u32 s11, s12, s16")
    k.stamps.mark()
    k(f"s_mov_b32 exec_lo, 0x10001\ns_mov_b32 exec_hi, 0x10001\nds_write_b128 v48, {vr(CSA)}\nds_write_b128 v48, {vr(CSA+4)} offset:64\ns_mov_b64 exec, -1")
    k.wait_lg(); k.barrier()
    for t in range(4): k(f"ds_read_b64 {vr(REC + 2*t, 2)}, v17 offset:{128*t}")
    for c in range(2): k(f"ds_read_b128 {vr(CS + 4*c)}, v49 offset:{64*c}")
    k.stamps.mark()
    n = 0
    for c in range(4):
        cs = CSA + 4*c if c < 2 else CS + 4*(c - 2)
        for rwl in range(2):
            A = ACC + 16*c + 8*rwl
            tb = BF + 12*(n & 1); n += 1
            pk = tb + 8
            pr = [(tau, p) for tau in range(2) for p in range(2)]
            R = lambda tau: REC + 4*rwl + 2*tau
            for tau, p in pr: k(f"v_pk_fma_f32 {vr(A+4*tau+2*p, 2)}, {vr(R(tau), 2)}, {vr(cs+2*p, 2)}, {vr(A+4*tau+2*p, 2)} op_sel_hi:[0,1,1]")
            for tau, p in pr: k(f"v_pk_mul_f32 {vr(A+4*tau+2*p, 2)}, {vr(A+4*tau+2*p, 2)}, {vr(R(tau), 2)} op_sel:[0,1] op_sel_hi:[1,1]")
            for e in range(8): k(f"v_exp_f32 v{tb+e}, v{A+e}")
            for e in range(4): k(f"v_pk_add_f32 {vr(tb+2*e, 2)}, {vr(tb+2*e, 2)}, 1.0 op_sel_hi:[1,0]")
            for e in range(8): k(f"v_rcp_f32 v{tb+e}, v{tb+e}")
            for e in range(4): k(f"v_pk_mul_f32 {vr(A+2*e, 2)}, {vr(A+2*e, 2)}, {vr(tb+2*e, 2)}")
            for e in range(4): k(f"v_cvt_pk_bf16_f32 v{pk+e}, v{A+2*e}, v{A+2*e+1}")
            k(f"v_permlane16_swap_b32 v{pk}, v{pk+2}\nv_permlane16_swap_b32 v{pk+1}, v{pk+3}")
            k(f"buffer_store_dwordx4 {vr(pk)}, v18, s[36:39], s{84+4*rwl+c} offen {ST}")
    k.stamps.mark()
    k.stamps.n = 5 if opt.get("stamps") != 3 else 8
    k.stamps.flush(0)

def mma_f(k, opt):
    ST = opt.get("k1_store", "sc1")
    k.stamps.reset(1)
    ONES, T, XL, U, BF, SUM, GRAM, ACC = 0, 4, 16, 32, 48, 112, 120, 128
    RR = 32
    k(f"""
    s_lshl_b32 s74, s3, 12
    v_lshrrev_b32 v23, 1, v3
    v_xor_b32 v23, v23, v2
    v_lshl_add_u32 v8, v3, 7, s74
    v_lshl_add_u32 v8, v23, 4, v8
    v_xor_b32 v9, 64, v8
    v_add_u32 v12, 0x4000, v46
    v_lshrrev_b32 v26, 3, v1
    v_lshlrev_b32 v11, 14, v26
    v_sub_u32 v26, v21, v26
    v_and_b32 v26, 3, v26
    v_lshl_or_b32 v11, v26, 4, v11
    v_and_b32 v26, 4, v0
    v_lshl_or_b32 v11, v26, 10, v11
    s_and_b32 s63, s58, 12
    s_add_u32 s63, s63, s3
    s_and_b32 s84, s58, 3
    s_lshl2_add_u32 s63, s63, s84
    s_lshl_b32 s63, s63, 6
    s_xor_b32 s84, s56, 1
    s_lshl_b32 s84, s84, 13
    s_add_u32 s84, s84, s63
    s_add_u32 s84, s84, {WS_Y1}
    s_lshl_b32 s53, s3, 11
    s_add_u32 s53, s53, {SC + 8192}
    v_lshrrev_b32 v26, 1, v3
    v_add_u32 v26, v26, v2
    v_and_b32 v26, 3, v26
    v_lshl_add_u32 v14, v3, 6, s53
    v_lshl_add_u32 v14, v26, 4, v14
    v_add_u32 v15, s53, v46
    s_mov_b32 s85, 0x20000
    s_lshl_b32 s63, s3, 7
    s_add_u32 s63, s63, {SC + 1024}
    v_lshl_add_u32 v10, v2, 4, s63
    s_mov_b32 s88, 0xffff0000
    s_lshl_b32 s86, s56, 31
    s_or_b32 s86, s86, 1.0
    s_mov_b32 s77, 0x10000
    s_mov_b32 s78, 0
    s_lshl_b32 s63, s3, 8
    """)
    stats_setup(k, ONES)
    for i in range(U + 8, ACC + 128, 2): k(f"v_pk_mov_b32 {vr(i, 2)}, 0, 0")
    def make_u(h):
        o = [f"ds_read_b128 {vr(XL + 8*t + 4*hi)}, v{8+h} offset:{2048*t + 32768*hi}" for t in range(2) for hi in range(2)]
        o += ["s_nop 0"]*2
        for t in range(2):
            for e in range(4):
                a, b = XL + 8*t + e, XL + 8*t + 4 + e
                o += [f"v_lshlrev_b32 v{T}, 16, v{a}", f"v_and_b32 v{T+1}, s88, v{a}", f"v_lshlrev_b32 v{T+2}, 16, v{b}", f"v_and_b32 v{T+3}, s88, v{b}",
                      f"v_fmac_f32 v{T}, s86, v{T+2}", f"v_fmac_f32 v{T+1}, s86, v{T+3}", f"v_cvt_pk_bf16_f32 v{U+8*h+4*t+e}, v{T}, v{T+1}"]
        return o
    def stat():
        for t in range(2):
            for hi in range(2):
                x = vr(XL + 8*t + 4*hi)
                yield (SUM + 4*t, vr(ONES), x); yield (GRAM + 4*t, x, x)
    def mm(h, f, nxt, stats, bar=False):
        st = list(stat()) if stats else []
        for c in range(16):
            if bar and c == 8:
                while (len(f.q) % 7) != 0: f.pop(k, 1)
                for i in stats_publish(SUM, GRAM, T, 2): k(i)
            if bar and c == 10:
                k.wait_lg(n=2); k.barrier()
            for t in range(2):
                mfma(k, vr(ACC + 8*c + 4*t), vr(U + 8*h + 4*t), vr(BF + 4*c))
                f.pop(k, 2)
            if nxt is not None: k(f"ds_read_b128 {vr(BF + 4*c)}, v12 offset:{nxt + 1024*c}")
            if c >= 2 and st:
                for _ in range(2):
                    d, a, b = st.pop(0); mfma(k, vr(d), a, b); f.pop(k, 2)
        f.flush(k)
    k.stamps.mark()
    k.wait_lg()
    k.barrier()
    k.label("K1F_LOOP")
    k.barrier()
    f = Merge(); f.add(*make_u(0))
    mm(1, f, 0, True)
    f.add(*make_u(1))
    mm(0, f, 32768, True, bar=True)
    k(f"v_xor_b32 v8, s77, v8\nv_xor_b32 v9, s77, v9\nv_xor_b32 v12, s77, v12\ns_add_u32 s78, s78, 1\ns_cmp_lt_u32 s78, 4")
    k.wait_lg()
    k("s_cbranch_scc1 K1F_LOOP")
    mm(1, Merge(), None, False)
    k.stamps.mark()
    k.barrier()
    for t in range(2): k(f"ds_read_b128 {vr(RR + 4*t)}, v10 offset:{64*t}")
    k.stamps.mark()
    pend = None
    for c in range(16):
        A = ACC + 8*c
        par = c & 1
        tb = BF + 8*par
        pk = tb + 4
        for e in range(4): k(f"v_pk_mul_f32 {vr(A+2*e, 2)}, {vr(A+2*e, 2)}, {vr(RR+2*e, 2)}")
        for e in range(4): k(f"v_cvt_pk_bf16_f32 v{pk+e}, v{A+2*e}, v{A+2*e+1}")
        if pend: k(pend)
        k(f"ds_write_b128 v14, {vr(pk)} offset:{1024*par}\nds_read_b128 {vr(tb)}, v15 offset:{1024*par}")
        pend = f"buffer_store_dwordx4 {vr(tb)}, v11, s[36:39], s84 offen {ST}\ns_add_u32 s84, s84, s85"
    k(pend)
    k.stamps.mark()
    k.stamps.n = 4
    k.stamps.flush(0)
```

```python
from k1 import *

def build_k2(opt):
    DEPTH = opt.get("k2_depth", 2)
    NS = DEPTH + 1
    NH = DEPTH + 1
    LDS_RED = 0
    k = Prog("k2_kernel", 256, 320, lds=LDS_RED + 4*17408, vgpr=256)
    ST = opt.get("k2_store", "sc1")
    st = Stamps(k, opt.get('stamps'), 1, 252)
    st.vb = 240
    prologue(k, 256)
    k("""
    v_and_b32 v1, 63, v0
    v_lshrrev_b32 v4, 6, v0
    v_lshrrev_b32 v2, 4, v1
    v_and_b32 v3, 15, v1
    v_readfirstlane_b32 s3, v4
    s_cmp_eq_u32 s3, 0
    s_cbranch_scc1 FFT_WAVE
    """)
    snap = k.snapshot()
    k("s_sub_u32 s3, s3, 1")
    k("""
    s_and_b32 s56, s2, 7
    s_lshr_b32 s57, s2, 3
    s_lshl_b32 s58, s56, 2
    s_lshr_b32 s59, s57, 3
    s_add_u32 s58, s58, s59
    s_and_b32 s60, s57, 7
    """)
    k(f"""
    v_lshlrev_b32 v5, 4, v1
    s_mul_i32 s62, s3, 14
    s_lshr_b32 s61, s58, 1
    s_mul_i32 s61, s61, 56
    s_add_u32 s61, s61, s62
    s_lshl_b32 s61, s61, 1
    s_and_b32 s63, s58, 1
    s_add_u32 s61, s61, s63
    s_lshl_b32 s61, s61, 12
    s_lshr_b32 s63, s60, 1
    s_mul_i32 s63, s63, 56
    s_add_u32 s62, s62, s63
    s_lshl_b32 s62, s62, 1
    s_and_b32 s63, s60, 1
    s_add_u32 s62, s62, s63
    s_lshl_b32 s62, s62, 12
    s_lshl_b32 s63, s60, 7
    """)
    k(f"""
    v_mul_u32_u24 v26, 272, v3
    v_lshl_add_u32 v26, v2, 4, v26
    s_mul_i32 s78, s3, 17408
    s_add_u32 s78, s78, {LDS_RED}
    """)
    k("v_add_u32 v15, s78, v26")
    k(f"""
    v_lshrrev_b32 v26, 3, v1
    v_mul_u32_u24 v19, 272, v26
    v_and_b32 v27, 7, v1
    v_lshl_add_u32 v19, v27, 5, v19
    s_mul_i32 s79, s3, {16*272}
    s_add_u32 s79, s79, {LDS_RED}
    v_add_u32 v19, s79, v19
    v_and_b32 v26, 3, v26
    v_lshlrev_b32 v14, 16, v26
    v_lshrrev_b32 v26, 5, v1
    v_lshl_add_u32 v14, v26, 10, v14
    v_lshl_add_u32 v14, v27, 4, v14
    s_and_b32 s79, s58, 1
    s_lshl_b32 s79, s79, 20
    s_bfe_u32 s78, s58, 0x20001
    s_lshl_b32 s78, s78, 18
    s_add_u32 s79, s79, s78
    s_lshr_b32 s78, s58, 3
    s_lshl_b32 s78, s78, 14
    s_add_u32 s79, s79, s78
    s_lshl_b32 s78, s3, 12
    s_add_u32 s79, s79, s78
    s_add_u32 s79, s79, s63
    v_add_u32 v14, s79, v14
    """)
    k.wait_lg()
    srd(k, 24, 20, 21, 32*56*4096, WS_H)
    srd(k, 28, 20, 21, 1835008, WS_W2P)
    srd(k, 32, 20, 21, 2097152, WS_G)
    ACC, HB = 32, 96
    BF = HB + 16
    def load(s):
        o = []
        for i in range(4):
            o.append(f"buffer_load_dwordx4 {vr(HB + 32*(s % NH) + 4*i)}, v5, s[24:27], s61 offen offset:{1024*i}")
            o.append(f"buffer_load_dwordx4 {vr(HB + 32*(s % NH) + 16 + 4*i)}, v5, s[28:31], s62 offen offset:{1024*i}")
        o[-1] += "\ns_addk_i32 s61, 0x2000\ns_addk_i32 s62, 0x2000"
        return o
    st.mark()
    for s in range(DEPTH):
        for f in load(s): k(f)
    for s in range(14):
        ld = load(s + DEPTH) if s + DEPTH < 14 else []
        n = 0
        for c in range(4):
            for T in range(4):
                d = ACC + 16*c + 4*T
                k(f"v_mfma_f32_16x16x32_bf16 {vr(d)}, {vr(HB + 32*(s % NH) + 16 + 4*c)}, {vr(HB + 32*(s % NH) + 4*T)}, {'0' if s == 0 else vr(d)}")
                if n % 2 == 0 and ld: k(ld.pop(0))
                n += 1
    st.mark()
    for c in range(4):
        for T in range(4):
            k(f"ds_write_b128 v15, {vr(ACC + 16*c + 4*T)} offset:{16*272*T + 64*c}")
    k.wait_lg(); st.mark(); k.barrier(); st.mark()
    for i in range(4):
        for e in range(2):
            for h in range(2):
                k(f"ds_read_b128 {vr(ACC + 16*i + 8*e + 4*h)}, v19 offset:{17408*i + 8*272*e + 16*h}")
    for i in range(1, 4):
        for e in range(16):
            k(f"v_add_f32 v{ACC+e}, v{ACC+e}, v{ACC+16*i+e}")
    Tm = BF
    k(f"s_mov_b32 s79, {fx(-0.6931471805599453)}")
    for e in range(16): k(f"v_exp_f32 v{Tm+e}, v{ACC+e}")
    for e in range(16): k(f"v_mul_f32 v{ACC+e}, s79, v{ACC+e}")
    for e in range(16): k(f"v_add_f32 v{Tm+e}, 1.0, v{Tm+e}")
    for e in range(16): k(f"v_rcp_f32 v{Tm+e}, v{Tm+e}")
    for e in range(16): k(f"v_mul_f32 v{ACC+e}, v{ACC+e}, v{Tm+e}")
    for e in range(8): k(f"v_cvt_pk_bf16_f32 v{HB+e}, v{ACC+2*e}, v{ACC+2*e+1}")
    for e in range(2):
        k(f"buffer_store_dwordx4 {vr(HB+4*e)}, v14, s[32:35], 0 offen offset:{2048*e} {ST}")
    st.mark()
    st.flush(0)
    k("s_endpgm")

    k.label("FFT_WAVE"); k.restore(snap)
    st = Stamps(k, opt.get('stamps'), 3, 252); st.n = 0
    st.mark()
    CT, D0, OPS, TW, WR, TM = 12, 60, 124, 172, 204, 236
    def cf(kind, fn, u): return vr(CT + 4*({"E": 0, "O": 4, "Op": 8}[kind] + 2*fn + u))
    def D(q, t, c): return D0 + ((q*2 + t)*2 + c)*4
    k("""
    v_lshlrev_b32 v5, 4, v1
    s_setprio 3
    s_lshl_b32 s61, s2, 13
    s_add_u32 s62, s61, 4096
    s_cmpk_eq_u32 s2, 255
    s_cselect_b32 s63, 1.0, 2.0
    v_cvt_f32_u32 v7, v3
    v_add_f32 v8, 0x41800000, v7
    v_lshlrev_b32 v9, 2, v2
    v_cvt_f32_u32 v9, v9
    """)
    k.wait_lg()
    srd(k, 24, 20, 21, 2097152, WS_Y1)
    srd(k, 28, 20, 21, 2097152, WS_WT)
    srd(k, 32, 20, 21, 2097152, WS_Y2)
    srd_table(k, 36, "CTAB", 12288)
    for pl in range(2):
        for tb in range(4):
            k(f"buffer_load_dwordx4 {vr(OPS + 16*pl + 4*tb)}, v5, s[24:27], s{61+pl} offen offset:{1024*tb}")
    k("s_movk_i32 s64, 0x1000\ns_movk_i32 s65, 0x2000")
    for i in range(12):
        so = ["0", "s64", "s65"][i // 4]
        k(f"buffer_load_dwordx4 {vr(CT + 4*i)}, v5, s[36:39], {so} offen offset:{1024*(i % 4)}")
    for i in range(8):
        k(f"buffer_load_dwordx4 {vr(WR + 4*i)}, v5, s[28:31], s{61 + i//4} offen offset:{1024*(i % 4)}")
    k(f"s_setprio {opt.get('k2_fftprio', 1)}")
    def twgen(fwd):
        o = []
        for q in range(4):
            for t in range(2):
                for r in range(4):
                    i = (q*2 + t)*4 + r
                    a = TM + 3*(i % 4)
                    if fwd:
                        o.append(f"v_add_f32 v{a}, {fx(16.0*q + r)}, v9")
                        o.append(f"v_mul_f32 v{a}, v{a}, v{7+t}")
                    else:
                        o.append(f"v_add_f32 v{a}, {fx(16.0*t + r)}, v9")
                        o.append(f"v_add_f32 v{a+1}, {fx(16.0*q)}, v7")
                        o.append(f"v_mul_f32 v{a}, v{a}, v{a+1}")
                    o.append(f"v_mul_f32 v{a}, {fx(1/2048)}, v{a}")
                    o.append(f"v_cos_f32 v{a+1}, v{a}")
                    o.append(f"v_sin_f32 v{a+2}, v{a}")
                    if fwd:
                        o.append(f"v_mul_f32 v{a+1}, s63, v{a+1}")
                        o.append(f"v_mul_f32 v{a+2}, s63, v{a+2}")
                    o.append(f"v_cvt_pk_f16_f32 v{TW+i}, v{a+1}, v{a+2}")
        return o
    for ins in twgen(True): k(ins)
    def mm(d, a, b, first): k(f"v_mfma_f32_16x16x32_bf16 {vr(d)}, {a}, {b}, {'0' if first else vr(d)}")
    LO, HI = "op_sel_hi:[0,1,0]", "op_sel:[0,1,0] op_sel_hi:[0,1,0]"
    def twmul(q, t, fwd):
        for r in range(4):
            re, im, tw = D(q, t, 0) + r, D(q, t, 1) + r, TW + (q*2 + t)*4 + r
            a = TM + 2*r
            k(f"v_fma_mix_f32 v{a}, {'' if fwd else '-'}v{im}, v{tw}, 0 {HI}")
            k(f"v_fma_mix_f32 v{a+1}, {'-' if fwd else ''}v{re}, v{tw}, 0 {HI}")
        for r in range(4):
            re, im, tw = D(q, t, 0) + r, D(q, t, 1) + r, TW + (q*2 + t)*4 + r
            a = TM + 2*r
            k(f"v_fma_mix_f32 v{re}, v{re}, v{tw}, v{a} {LO}")
            k(f"v_fma_mix_f32 v{im}, v{im}, v{tw}, v{a+1} {LO}")
    st.mark()
    for i in range(16): k(f"v_xor_b32 v{OPS+32+i}, 0x80008000, v{OPS+i}")
    for t in range(2):
        for tb in range(4):
            zr, zi, nzr = vr(OPS + 4*tb), vr(OPS + 16 + 4*tb), vr(OPS + 32 + 4*tb)
            mm(D(tb, t, 0), zr, cf("E", 0, t), True);  mm(D(tb, t, 1), zi, cf("E", 0, t), True)
            mm(D(tb, t, 0), zi, cf("E", 1, t), False); mm(D(tb, t, 1), nzr, cf("E", 1, t), False)
    def F2(t, kind, pl): return OPS + ((t*2 + kind)*3 + pl)*4
    for t in range(2):
        for q in range(4): twmul(q, t, True)
    for t in range(2):
        for c in range(2):
            for tb in range(2):
                for h in range(2):
                    a, b = D(tb, t, c) + 2*h, D(tb + 2, t, c) + 2*h
                    tm = TM + 8 + 2*((2*tb + h) & 1)
                    k(f"v_add_f32 v{tm}, v{a}, v{b}\nv_add_f32 v{tm+1}, v{a+1}, v{b+1}\nv_sub_f32 v{b}, v{a}, v{b}\nv_sub_f32 v{b+1}, v{a+1}, v{b+1}")
                    k(f"v_cvt_pk_bf16_f32 v{F2(t,0,c)+2*tb+h}, v{tm}, v{tm+1}\nv_cvt_pk_bf16_f32 v{F2(t,1,c)+2*tb+h}, v{b}, v{b+1}")
                    if c == 0:
                        k(f"v_cvt_pk_bf16_f32 v{F2(t,0,2)+2*tb+h}, -v{tm}, -v{tm+1}\nv_cvt_pk_bf16_f32 v{F2(t,1,2)+2*tb+h}, -v{b}, -v{b+1}")
    fill = Merge(); fill.add(*twgen(False))
    for t in range(2):
        for u in range(4):
            kind, cn = (0, "E") if u < 2 else (1, "O")
            xr, xi, nxr = vr(F2(t, kind, 0)), vr(F2(t, kind, 1)), vr(F2(t, kind, 2))
            mm(D(u, t, 0), cf(cn, 0, u & 1), xr, True);  fill.pop(k, 2)
            mm(D(u, t, 1), cf(cn, 0, u & 1), xi, True);  fill.pop(k, 2)
            mm(D(u, t, 0), cf(cn, 1, u & 1), xi, False); fill.pop(k, 2)
            mm(D(u, t, 1), cf(cn, 1, u & 1), nxr, False); fill.pop(k, 2)
    fill.flush(k)
    st.mark()
    for t in range(2):
        for u in range(4):
            w = WR + (u*2 + t)*4
            for r in range(4):
                op = "v_and_b32 v%d, 0xffff0000, v%d" if r & 1 else "v_lshlrev_b32 v%d, 16, v%d"
                k(op % (TM + r, w + (r >> 1))); k(op % (TM + 4 + r, w + 2 + (r >> 1)))
            for r in range(4):
                re, im = D(u, t, 0) + r, D(u, t, 1) + r
                k(f"v_mul_f32 v{TM+8+r}, v{im}, v{TM+4+r}\nv_mul_f32 v{TM+12+r}, v{re}, v{TM+4+r}")
            for r in range(4):
                re, im = D(u, t, 0) + r, D(u, t, 1) + r
                k(f"v_fma_f32 v{re}, v{re}, v{TM+r}, -v{TM+8+r}\nv_fma_f32 v{im}, v{im}, v{TM+r}, v{TM+12+r}")
            for h in range(2):
                re, im = D(u, t, 0) + 2*h, D(u, t, 1) + 2*h
                o = 2*(u & 1) + h
                k(f"v_cvt_pk_bf16_f32 v{F2(t,u>>1,0)+o}, v{re}, v{re+1}\nv_cvt_pk_bf16_f32 v{F2(t,u>>1,1)+o}, v{im}, v{im+1}\nv_cvt_pk_bf16_f32 v{F2(t,u>>1,2)+o}, -v{im}, -v{im+1}")
    for t in range(2):
        for par, cn in ((0, "E"), (1, "Op")):
            zr, zi, nzi = vr(F2(t, par, 0)), vr(F2(t, par, 1)), vr(F2(t, par, 2))
            for tb in range(2):
                q = tb + 2*par
                mm(D(q, t, 0), zr, cf(cn, 0, tb), True);  mm(D(q, t, 1), zi, cf(cn, 0, tb), True)
                mm(D(q, t, 0), nzi, cf(cn, 1, tb), False); mm(D(q, t, 1), zr, cf(cn, 1, tb), False)
    def F3(q, pl): return OPS + (q*3 + pl)*4
    for t in range(2):
        for c in range(2):
            for tb in range(2):
                for r in range(4):
                    a, b = D(tb, t, c) + r, D(tb + 2, t, c) + r
                    tm = TM + 8 + (r & 3)
                    k(f"v_sub_f32 v{tm}, v{a}, v{b}\nv_add_f32 v{a}, v{a}, v{b}\nv_mov_b32 v{b}, v{tm}")
        for q in range(4):
            twmul(q, t, False)
            for h in range(2):
                re, im = D(q, t, 0) + 2*h, D(q, t, 1) + 2*h
                o = 2*t + h
                k(f"v_cvt_pk_bf16_f32 v{F3(q,0)+o}, v{re}, v{re+1}\nv_cvt_pk_bf16_f32 v{F3(q,1)+o}, v{im}, v{im+1}\nv_cvt_pk_bf16_f32 v{F3(q,2)+o}, -v{im}, -v{im+1}")
    for q in range(4):
        tr, ti, nti = vr(F3(q, 0)), vr(F3(q, 1)), vr(F3(q, 2))
        for ta in range(2):
            mm(D(q, ta, 0), cf("E", 0, ta), tr, True);  mm(D(q, ta, 1), cf("E", 0, ta), ti, True)
            mm(D(q, ta, 0), cf("E", 1, ta), nti, False); mm(D(q, ta, 1), cf("E", 1, ta), tr, False)
    k("v_lshlrev_b32 v6, 8, v2\nv_lshl_add_u32 v6, v3, 3, v6")
    for q in range(4):
        for c in range(2):
            pk = WR + (q*2 + c)*4
            for ta in range(2):
                for h in range(2):
                    a = D(q, ta, c) + 2*h
                    k(f"v_cvt_pk_bf16_f32 v{pk+2*ta+h}, v{a}, v{a+1}")
                k(f"buffer_store_dwordx2 {vr(pk+2*ta, 2)}, v6, s[32:35], s{61+c} offen offset:{1024*q + 128*ta} {ST}")
    st.flush(0)
    k.label(f"END_{k.name}")
    k("s_endpgm")
    return k
```

```python
from k1 import *

def build_k3(opt):
    k = Prog("k3_kernel", 256, 256, lds=65536 + 64*144, vgpr=256)
    st = Stamps(k, opt.get('stamps'), 2, 200)
    prologue(k, 256)
    st.mark()
    k("""
    v_and_b32 v1, 63, v0
    v_lshrrev_b32 v4, 6, v0
    v_lshrrev_b32 v2, 4, v1
    v_and_b32 v3, 15, v1
    v_readfirstlane_b32 s3, v4
    s_and_b32 s56, s2, 7
    s_lshr_b32 s57, s2, 3
    s_lshl_b32 s58, s56, 2
    s_lshr_b32 s59, s57, 3
    s_add_u32 s58, s58, s59
    s_and_b32 s60, s57, 7
    """)
    k("""
    s_lshl_b32 s61, s60, 2
    s_add_u32 s61, s61, s3
    s_lshl_b32 s61, s61, 14
    v_lshlrev_b32 v5, 4, v1
    """)
    k("""
    v_lshrrev_b32 v27, 3, v1
    v_bfe_u32 v26, v1, 4, 1
    s_and_b32 s63, s3, 1
    s_lshl_b32 s63, s63, 1
    v_or_b32 v26, s63, v26
    v_lshlrev_b32 v26, 1, v26
    v_and_b32 v28, 7, v1
    v_xor_b32 v28, v28, v26
    v_lshlrev_b32 v28, 4, v28
    v_lshl_add_u32 v6, v27, 12, v28
    s_lshl_b32 s63, s3, 15
    s_lshl_b32 s64, s58, 7
    s_add_u32 s63, s63, s64
    v_add_u32 v6, s63, v6
    s_lshl_b32 s75, s3, 10
    """)
    k("""
    v_bfe_u32 v20, v1, 2, 2
    v_and_b32 v21, 3, v1
    v_lshl_add_u32 v22, v2, 3, v20
    v_lshlrev_b32 v23, 7, v22
    v_lshl_add_u32 v23, v21, 3, v23
    v_bfe_u32 v24, v1, 3, 1
    v_and_b32 v25, 1, v2
    v_lshl_add_u32 v24, v25, 1, v24
    """)
    for c in range(4): k(f"v_xor_b32 v26, {c}, v24\nv_lshl_add_u32 v{8+c}, v26, 5, v23")
    k("""
    v_lshrrev_b32 v26, 5, v1
    v_lshlrev_b32 v12, 10, v26
    v_bfe_u32 v26, v1, 3, 2
    v_lshl_add_u32 v12, v26, 16, v12
    v_and_b32 v27, 7, v1
    v_lshl_add_u32 v12, v27, 4, v12
    s_bfe_u32 s63, s58, 0x20001
    s_lshl_b32 s63, s63, 18
    s_lshr_b32 s64, s58, 3
    s_lshl_b32 s64, s64, 14
    s_add_u32 s63, s63, s64
    s_and_b32 s64, s58, 1
    s_lshl_b32 s64, s64, 20
    s_add_u32 s63, s63, s64
    s_lshl_b32 s64, s3, 12
    s_add_u32 s63, s63, s64
    s_lshl_b32 s64, s60, 7
    s_add_u32 s63, s63, s64
    v_add_u32 v12, s63, v12
    v_mul_u32_u24 v13, 144, v3
    v_lshl_add_u32 v13, v2, 3, v13
    s_lshl_b32 s63, s3, 5
    s_add_u32 s63, s63, 65536
    v_add_u32 v13, s63, v13
    v_lshrrev_b32 v26, 3, v1
    v_mul_u32_u24 v14, 144, v26
    v_lshl_add_u32 v14, v27, 4, v14
    s_mul_i32 s63, s3, 2304
    s_add_u32 s63, s63, 65536
    v_add_u32 v14, s63, v14
    """)
    k.wait_lg()
    srd(k, 24, 20, 21, 2097152, WS_Y2)
    srd_table(k, 28, "FFRG", 524288)
    srd(k, 32, 20, 21, 2097152, WS_G)
    srd(k, 36, 4, 5, 2097152)
    srd(k, 40, 16, 17, 2097152)
    FB, ACC, BF, XG, TM = 32, 96, 112, 144, 160
    k("s_mov_b32 s62, 0")
    for s in range(16):
        k(f"s_add_u32 m0, s75, {s*4096}")
        k(f"buffer_load_dwordx4 v6, s[24:27], s62 offen lds", tag=("Y", s))
        k(f"buffer_load_dwordx4 {vr(FB + 4*s)}, v5, s[28:31], s61 offen offset:{1024*(s & 3)}", tag=("F", s))
        k("s_add_u32 s62, s62, 0x20000")
        if s % 4 == 3: k("s_add_u32 s61, s61, 4096")
    for e in range(2):
        k(f"buffer_load_dwordx4 {vr(XG + 4*e)}, v12, s[32:35], 0 offen offset:{2048*e}")
        k(f"buffer_load_dwordx4 {vr(XG + 8 + 4*e)}, v12, s[36:39], 0 offen offset:{2048*e}")
    st.mark()
    STG = opt.get("k3_stg", 4)
    def reads(s):
        for c in range(4):
            k(f"ds_read_b64_tr_b16 {vr(BF + 16*(s & 1) + 4*c, 2)}, v{8+c} offset:{s*4096}")
            k(f"ds_read_b64_tr_b16 {vr(BF + 16*(s & 1) + 4*c + 2, 2)}, v{8+c} offset:{s*4096 + 512}")
    k.wait_vm(tag=("Y", STG-1)); k.barrier()
    st.mark()
    reads(0)
    for s in range(16):
        if s + 1 < 16:
            if (s + 1) % STG == 0:
                k.wait_vm(tag=("Y", s + STG)); k.barrier()
            reads(s + 1)
        for c in range(4):
            d = ACC + 4*c
            k(f"v_mfma_f32_16x16x32_bf16 {vr(d)}, {vr(FB + 4*s)}, {vr(BF + 16*(s & 1) + 4*c)}, {'0' if s == 0 else vr(d)}")
    st.mark()
    for e in range(8): k(f"v_cvt_pk_bf16_f32 v{TM+e}, v{ACC+2*e}, v{ACC+2*e+1}")
    for c in range(4): k(f"ds_write_b64 v13, {vr(TM + 2*c, 2)} offset:{16*144*c}")
    k.wait_lg(); k.barrier()
    for e in range(2): k(f"ds_read_b128 {vr(TM + 4*e)}, v14 offset:{8*144*e}")
    U = TM + 8
    for i in range(8):
        s_, g_, x_ = TM + i, XG + i, XG + 8 + i
        u = U + 6*(i & 1)
        k(f"""
        v_lshlrev_b32 v{u}, 16, v{s_}
        v_and_b32 v{u+1}, 0xffff0000, v{s_}
        v_lshlrev_b32 v{u+2}, 16, v{g_}
        v_and_b32 v{u+3}, 0xffff0000, v{g_}
        v_lshlrev_b32 v{u+4}, 16, v{x_}
        v_and_b32 v{u+5}, 0xffff0000, v{x_}
        v_fma_f32 v{u}, v{u}, v{u+2}, v{u+4}
        v_fma_f32 v{u+1}, v{u+1}, v{u+3}, v{u+5}
        v_cvt_pk_bf16_f32 v{ACC+i}, v{u}, v{u+1}
        """)
        if i % 4 == 3:
            e = i // 4
            k(f"buffer_store_dwordx4 {vr(ACC + 4*e)}, v12, s[40:43], 0 offen offset:{2048*e}")
    st.mark()
    st.flush(0)
    k.label(f"END_{k.name}")
    k("s_endpgm")
    return k
```

```python
import numpy as np
def bf2f(a): return (a.astype(np.uint32) << 16).view(np.float32)
def f2bf(x):
    u = np.ascontiguousarray(x, dtype=np.float32).view(np.uint32).astype(np.uint64)
    return ((u + 0x7fff + ((u >> 16) & 1)) >> 16).astype(np.uint16)
def rb(x): return bf2f(f2bf(x))

WS_H = 0x0000000
WS_Y1 = 0x0800000
WS_WT = 0x0A00000
WS_Y2 = 0x0C00000
WS_W2P = 0x1000000
WS_G = 0x0E00000


def ftable():
    d = np.arange(512)[:, None]; k = np.arange(1, 257)[None, :]
    F = np.zeros((512, 512), np.float64)
    F[:, 0::2] = np.cos(2*np.pi*((d*k) % 512)/512); F[:, 1::2] = -np.sin(2*np.pi*((d*k) % 512)/512)
    F[np.abs(F) < 1e-9] = 0
    return rb(F)

def model(z):
    x = bf2f(z["A_x"]).reshape(2048, 512); wr = bf2f(z["A_w_r"]); wi = bf2f(z["A_w_i"])
    w1 = bf2f(z["B_w1"]); w2 = bf2f(z["B_w2"])
    m = x.mean(1, dtype=np.float64).astype(np.float32)
    var = ((x.astype(np.float64)**2).mean(1) - m.astype(np.float64)**2).astype(np.float32)
    sd = rb(np.sqrt(rb(rb(var) + np.float32(1e-5))))
    mb = rb(m)
    u = x @ w1 - mb[:, None]*w1.sum(0)[None, :]
    y = u / sd[:, None]
    h = rb(np.float32(-1.4426950408889634) * y / (1 + np.exp(-y)))
    F = ftable()
    sg = np.where(np.arange(512) // 2 % 2 == 0, -1.0, 1.0).astype(np.float32)
    Y1 = np.where(sg[None, :] > 0, rb(x[:, :256] + x[:, 256:]) @ F[:256], rb(x[:, :256] - x[:, 256:]) @ F[:256])
    Y1 = rb(Y1 / sd[:, None])
    out = {}
    mu = np.arange(16)[:, None, None, None, None, None]; S = np.arange(56)[None, :, None, None, None, None]
    T = np.arange(8)[None, None, :, None, None, None]; sl = np.arange(4)[None, None, None, :, None, None]
    j = np.arange(16)[None, None, None, None, :, None]; t = np.arange(8)[None, None, None, None, None, :]
    n = 64*(16*(T >> 2) + 4*(mu & 3) + (j & 3)) + 16*(mu >> 2) + 4*(T & 3) + (j >> 2)
    f = 32*S + 8*sl + t
    out["W2P"] = w2[f, 128*mu[:4] + 16*T + j]
    out["H"] = h[n, f]
    kp = np.arange(512)[:, None, None, None, None]; tb = np.arange(4)[None, :, None, None, None]
    g5 = np.arange(4)[None, None, :, None, None]; j5 = np.arange(16)[None, None, None, :, None]; t5 = np.arange(8)[None, None, None, None, :]
    nY = 64*(16*(t5 >> 2) + 4*g5 + (t5 & 3)) + 16*tb + j5
    out["Y1"] = Y1[nY, kp]
    kap = np.arange(256)[:, None, None, None, None, None]; uu = np.arange(4)[None, :, None, None, None, None]
    tk = np.arange(2)[None, None, :, None, None, None]; g = np.arange(4)[None, None, None, :, None, None]
    j = np.arange(16)[None, None, None, None, :, None]; r = np.arange(4)[None, None, None, None, None, :]
    k1 = 16*tk + j + 64*(16*(uu & 1) + 4*g + r) + 32*(uu >> 1)
    col = kap + 1
    out["WT"] = np.concatenate([wr[k1, col], wi[k1, col]], axis=-1)
    Zc = Y1[:, 0::2] + 1j*Y1[:, 1::2]
    W = (wr + 1j*wi)[:, 1:257]
    Y2c = np.fft.ifft(np.fft.fft(Zc, axis=0)*W, axis=0) / 512 * np.where(np.arange(256) == 255, 1.0, 2.0)[None, :]
    Y2 = np.zeros((2048, 512), np.float32); Y2[:, 0::2] = Y2c.real; Y2[:, 1::2] = Y2c.imag
    Y2 = rb(Y2)
    y2 = Y2[nY, kp].reshape(512, 4, 4, 16, 2, 4)
    out["Y2"] = np.ascontiguousarray(y2.transpose(0, 1, 2, 4, 3, 5))
    o = (h @ w2) * np.float32(-0.6931471805599453)
    gg = rb(o / (1 + np.exp(-o)))
    out["G"] = gg
    s = rb(Y2 @ F.T)
    out["out"] = rb(x + rb(s*gg))
    return out

if __name__ == "__main__":
    z = np.load("ref0.npz")
    o = model(z)
    err = np.abs(o["out"].reshape(-1) - z["ref"])
    print("model vs ref: max", err.max(), "rms", np.sqrt((err**2).mean()))
```

```python
import numpy as np
from model import f2bf
def ftab_asm():
    s = "; bf16 cos(2 pi i/512)\n"
    for i in range(512):
        c = np.cos(2*np.pi*i/512)
        if abs(c) < 1e-9: c = 0.0
        s += f".set CS{i}, {int(f2bf(np.array([c]))[0]):#x}\n"
    s += """.altmacro
.macro EMITCS i
.short CS\\i
.endm
.p2align 8
.type FB2,@object
FB2:
.set ff, 0
.rept 256
.set ll, 0
.rept 64
.set kk, 2*(8*(ff & 15) + ((ll & 15) >> 1)) + 2 - (ff >> 7)
.set ang, ((32*((ff >> 4) & 7) + 8*(ll >> 4))*kk + 128*(ll & 1)) & 511
.rept 8
EMITCS %ang
.set ang, (ang + kk) & 511
.endr
.set ll, ll + 1
.endr
.set ff, ff + 1
.endr
.size FB2, 262144
.type FFRG,@object
FFRG:
.set ff, 0
.rept 512
.set ll, 0
.rept 64
.set dd, 16*(ff >> 4) + (ll & 15)
.set ang, (dd * (16*(ff & 15) + 4*(ll >> 4) + 1)) & 511
.rept 4
EMITCS %ang
.set an2, (ang + 128) & 511
EMITCS %an2
.set ang, (ang + dd) & 511
.endr
.set ll, ll + 1
.endr
.set ff, ff + 1
.endr
.size FFRG, 524288
.noaltmacro
"""
    return s
def ctab():
    l = np.arange(64); g = (l >> 4)[:, None]; j = (l & 15)[:, None]; t = np.arange(8)[None, :]
    Sl = 16*(t >> 2) + 4*g + (t & 3)
    fr = []
    for kind in ("E", "O", "Op"):
        for fn in (np.cos, np.sin):
            for u in range(2):
                L = 16*u + j
                if kind == "E": ang = (L*Sl % 32)/32
                elif kind == "O": ang = (Sl*(2*L + 1) % 64)/64
                else: ang = (L*(2*Sl + 1) % 64)/64
                v = fn(2*np.pi*ang); v[np.abs(v) < 1e-9] = 0
                fr.append(f2bf(v/32))
    return np.stack(fr)
def ctab_asm():
    d = np.ascontiguousarray(ctab()).view(np.uint32).reshape(-1, 8)
    s = ".type CTAB,@object\nCTAB:\n"
    for row in d: s += ".long " + ",".join(f"{int(x):#x}" for x in row) + "\n"
    s += ".size CTAB, 12288\n"
    return s
```

```python
import sys, json
from k1 import build_k1
from k2 import build_k2
from k3 import build_k3
from emit import build
from tables import ftab_asm, ctab_asm
def gen(opt):
    ks = [build_k1(opt), build_k2(opt), build_k3(opt)]
    for k in ks: print(k.name, "ins", k.stats, "maxv", k.maxv, "maxa", k.maxa, "maxs", k.maxs, "lds", k.lds, file=sys.stderr)
    return build(ks, rodata=ftab_asm() + ctab_asm())
if __name__ == "__main__":
    out = sys.argv[1]
    opt = json.loads(sys.argv[2]) if len(sys.argv) > 2 else {}
    open(out, "w").write(gen(opt))
```

```python
import sys
from k1 import *
from k2 import build_k2
from k3 import build_k3
from emit import build, Prog
from tables import ftab_asm, ctab_asm
def spin(us):
    k = Prog("spin_kernel", 256, 64, vgpr=16)
    k._out("s_memrealtime s[4:5]"); k._out("s_waitcnt lgkmcnt(0)"); k._out(f"s_add_u32 s6, s4, {us*100}")
    k.label("SP"); k._out("s_memrealtime s[4:5]"); k._out("s_waitcnt lgkmcnt(0)"); k._out("s_cmp_lt_u32 s4, s6"); k._out("s_cbranch_scc1 SP"); k._out("s_endpgm")
    k.maxv = 1; k.maxs = 16
    return k
def touch():
    k = Prog("touch_kernel", 256, 64, vgpr=32)
    k("s_load_dwordx16 s[4:19], s[0:1], 0\ns_load_dwordx2 s[20:21], s[0:1], 64\nv_mov_b32 v1, 0\nv_lshlrev_b32 v2, 21, v0\nv_min_u32 v2, 0x1000000, v2")
    for i, p in enumerate((4, 6, 8, 12, 14, 16)): k(f"global_load_dword v{4+i}, v1, s[{p}:{p+1}]")
    k("global_load_dword v12, v2, s[20:21]")
    k("s_getpc_b64 s[22:23]\ns_add_u32 s22, s22, FB2@rel32@lo+4\ns_addc_u32 s23, s23, FB2@rel32@hi+12\nglobal_load_dword v13, v1, s[22:23]")
    k.wait_vm(); k("s_endpgm")
    return k
def empty():
    k = Prog("empty_kernel", 256, 64, vgpr=16); k._out("s_endpgm"); k.maxv = 1; k.maxs = 16
    return k
opt = {}
ks = [build_k1(opt), build_k2(opt), build_k3(opt)]
R = ftab_asm() + ctab_asm()
def w(fn, L):
    s = build(ks + [x for x in L if x not in ks], rodata=R)
    lines = s.split("\n")
    body = [l for l in lines if not l.startswith("; @launch")]
    idx = next(i for i, l in enumerate(body) if not l.startswith(";"))
    hdr = [f"; @launch kernel={k.name} grid=({k.grid},1,1) block=({k.block},1,1) lds={k.lds}" for k in L]
    open(fn, "w").write("\n".join(body[:idx] + hdr + body[idx:]))
w("../exp/d_spin.s", [spin(20)] + ks)
w("../exp/d_touch.s", [touch()] + ks)
w("../exp/d_empty.s", [empty()] + ks)
w("../exp/d_twice.s", ks + ks)
def rec():
    k = Prog("rec_kernel", 1, 64, vgpr=16)
    k("s_memrealtime s[4:5]\ns_load_dwordx2 s[20:21], s[0:1], 64\nv_mov_b32 v1, 0x4000000")
    k("v_mov_b32 v2, s4\nglobal_store_dword v1, v2, s[20:21]\ns_endpgm")
    return k
def gate(us):
    k = Prog("gate_kernel", 1, 64, vgpr=16)
    k("s_load_dwordx2 s[20:21], s[0:1], 64\nv_mov_b32 v1, 0x4000000")
    k("global_load_dword v2, v1, s[20:21]\nv_readfirstlane_b32 s6, v2")
    k(f"s_add_u32 s6, s6, {us*100}")
    k.label("SP"); k._out("s_memrealtime s[4:5]"); k._out("s_waitcnt lgkmcnt(0)"); k._out("s_sub_u32 s7, s4, s6"); k._out("s_cmp_lt_i32 s7, 0"); k._out("s_cbranch_scc1 SP"); k._out("s_endpgm")
    return k
r, g = rec(), gate(60)
w("../exp/d_g3.s", [r] + ks + [g])
w("../exp/d_g2.s", [r] + ks[:2] + [g] + ks[2:])
w("../exp/d_g1.s", [r] + ks[:1] + [g] + ks[1:])
w("../exp/d_g0.s", [r, g] + ks)
```

```python
import struct, re
from emit import *
from model import WS_H, WS_Y1, WS_WT, WS_Y2, WS_G, WS_W2P
def f2u(x): return struct.unpack("<I", struct.pack("<f", x))[0]
def fx(x): return hex(f2u(x))
LOG2E = 1.4426950408889634

def prologue(k, nblk):
    k(f"""
    s_cmp_ge_u32 s2, {nblk}
    s_cbranch_scc1 END_{k.name}
    s_load_dwordx16 s[4:19], s[0:1], 0
    s_load_dwordx2 s[20:21], s[0:1], 64
    """)
def srd(k, d, lo, hi, size, add=None):
    if add is None:
        k(f"s_mov_b32 s{d}, s{lo}\ns_mov_b32 s{d+1}, s{hi}")
    else:
        k(f"s_add_u32 s{d}, s{lo}, {add}\ns_addc_u32 s{d+1}, s{hi}, 0")
    k(f"s_mov_b32 s{d+2}, {size}\ns_mov_b32 s{d+3}, 0x20000")
def srd_table(k, d, sym, size):
    k(f"s_getpc_b64 s[{d}:{d+1}]")
    k(f"s_add_u32 s{d}, s{d}, {sym}@rel32@lo+4")
    k(f"s_addc_u32 s{d+1}, s{d+1}, {sym}@rel32@hi+12")
    k(f"s_mov_b32 s{d+2}, {size}\ns_mov_b32 s{d+3}, 0x20000")

STAMP = 0x8000000
class Stamps:
    def __init__(self, k, on, slot, vbase): self.k, self.on, self.slot, self.n, self.vb = k, on, slot, 0, vbase
    def reset(self, n): self.n = n
    def mark(self, name=None):
        if not self.on: return
        if name is not None and (not isinstance(self.on, list) or name not in self.on): return
        if name is None and isinstance(self.on, list) and "front" in self.on and self.n > 0 and not getattr(self, "fl", 0): return
        k = self.k
        k("s_memrealtime s[100:101]" if False else "s_memrealtime s[22:23]")
        if getattr(k, 'clk', 0): k("s_memtime s[100:101]" if False else "s_memtime s[90:91]" if False else "s_memtime s[0:1]")
        k.wait_lg()
        if getattr(k, "allw", 0): k(f"s_mov_b32 s{4 + self.n}, s22")
        else: k(f"v_mov_b32 v{self.vb + self.n}, s22")
        if getattr(k, 'clk', 0): k(f"v_mov_b32 v255, s0\nv_accvgpr_write_b32 a{200 + self.n}, v255")
        self.n += 1
    def flush(self, who):
        if not self.on: return
        k = self.k
        k._out('s_waitcnt vmcnt(0)'); k.S.vm = []
        self.fl = 1; self.mark(); self.fl = 0
        L = k.newlabel("NOST")
        if getattr(k, "allw", 0):
            self.vb = 20
            for i in range(self.n): k(f"v_mov_b32 v{20+i}, s{4+i}")
        if getattr(k, "allw", 0):
            k(f"s_lshl_b32 s22, s2, 3\ns_add_u32 s22, s22, s3\ns_lshl_b32 s22, s22, 6\ns_add_u32 s22, s22, {STAMP + 65536}\nv_mov_b32 v1, s22")
            for i in range(self.n): k(f"global_store_dword v1, v{self.vb+i}, s[20:21] offset:{4*i}")
        k(f"s_cmp_lg_u32 s3, {who}\ns_cbranch_scc1 {L}")
        k(f"s_lshl_b32 s22, s2, 6\ns_add_u32 s22, s22, {STAMP + self.slot*16384}\nv_mov_b32 v1, s22")
        for i in range(self.n): k(f"global_store_dword v1, v{self.vb+i}, s[20:21] offset:{4*i}")
        if getattr(k, 'clk', 0):
            for i in range(self.n): k(f"global_store_dword v1, a{200+i}, s[20:21] offset:{32+4*i}")
        k.label(L)

def vr(a, n=4): return f"v[{a}:{a+n-1}]"
def ar(a, n=4): return f"a[{a}:{a+n-1}]"

class Merge:
    def __init__(self): self.q = []
    def add(self, *ins): self.q += list(ins)
    def pop(self, k, n):
        for _ in range(n):
            if not self.q: return
            it = self.q.pop(0)
            if callable(it): it()
            else: k(it)
    def flush(self, k): self.pop(k, len(self.q))


K1_LDS = 163840
FAR = "0x40000000"

def mfma(k, d, a, b, first=False):
    k(f"v_mfma_f32_16x16x32_bf16 {d}, {a}, {b}, {'0' if first else d}")

def spin_until(k, need, addr_v, lab, tmp_v=None, width=1, off=0, sleep=0):
    L, L2 = k.newlabel(lab), k.newlabel(lab)
    if sleep:
        k(f"s_branch {L2}"); k.label(L); k(f"s_sleep {sleep}"); k.label(L2)
    else: k.label(L)
    if width == 1: k(f"ds_read_b32 v{tmp_v}, v{addr_v} offset:{off}")
    elif width == 2: k(f"ds_read_b64 {vr(tmp_v, 2)}, v{addr_v} offset:{off}\nv_min_u32 v{tmp_v}, v{tmp_v}, v{tmp_v+1}")
    else: k(f"ds_read_b128 {vr(tmp_v)}, v{addr_v} offset:{off}\nv_min_u32 v{tmp_v}, v{tmp_v}, v{tmp_v+1}\nv_min3_u32 v{tmp_v}, v{tmp_v}, v{tmp_v+2}, v{tmp_v+3}")
    k(f"v_readfirstlane_b32 s52, v{tmp_v}\ns_cmp_lt_u32 s52, {need}\ns_cbranch_scc1 {L}")
def slow_paths(k, slow, fv, av):
    for Ls, Lb in slow:
        k.label(Ls)
        for i in ("s_sleep 1", f"ds_read_b64 v[{fv}:{fv+1}], v{av}", "s_waitcnt lgkmcnt(0)", f"v_min_u32 v{fv}, v{fv}, v{fv+1}", "s_nop 0", f"v_readfirstlane_b32 s52, v{fv}",
                  "s_nop 3", "s_cmp_lt_u32 s52, s79", f"s_cbranch_scc1 {Ls}", f"s_branch {Lb}"): k._out(i)

def build_k1(opt):
    k = Prog("k1_kernel", 256, 512, lds=K1_LDS, vgpr=256)
    k.stamps = Stamps(k, opt.get("stamps"), 0, 248)
    k.allw = 1
    k(f"""
    s_cmpk_ge_u32 s2, 256
    s_cbranch_scc1 END_{k.name}
    s_load_dwordx2 s[24:25], s[0:1], 0
    s_load_dwordx2 s[28:29], s[0:1], 32
    s_load_dwordx2 s[36:37], s[0:1], 64
    s_load_dwordx2 s[44:45], s[0:1], 8
    s_load_dwordx2 s[48:49], s[0:1], 16
    s_load_dwordx2 s[40:41], s[0:1], 40
    """)
    if opt.get("stamps"): k("s_load_dwordx2 s[20:21], s[0:1], 64")
    k(f"""
    v_lshrrev_b32 v4, 6, v0
    v_and_b32 v1, 63, v0
    v_readfirstlane_b32 s3, v4
    v_lshrrev_b32 v2, 4, v1
    v_and_b32 v3, 15, v0
    v_and_b32 v21, 3, v0
    v_lshlrev_b32 v46, 4, v1
    s_lshr_b32 s59, s2, 6
    s_bfe_u32 s58, s2, 0x20001
    s_lshl2_add_u32 s58, s58, s59
    s_bfe_u32 s60, s2, 0x30003
    s_and_b32 s56, s2, 1
    s_mov_b32 s38, 0x1200000
    s_mov_b32 s39, 0x20000
    s_and_b32 s55, s3, 3
    """)
    k.stamps.mark()
    k(f"s_cmp_lt_u32 s3, 4\ns_cbranch_scc1 K1_MMA")
    snap = k.snapshot()
    k("s_cmp_ge_u32 s3, 6\ns_cbranch_scc1 K1_STAT")
    loader(k, opt)
    k("s_endpgm")
    k.label("K1_STAT"); k.restore(snap)
    stat_worker(k, opt)
    k("s_endpgm")
    k.label("K1_MMA"); k.restore(snap)
    k("s_cmp_eq_u32 s60, 7\ns_cbranch_scc1 K1_FM")
    snap2 = k.snapshot()
    mma_h(k, opt)
    k("s_endpgm")
    k.label("K1_FM"); k.restore(snap2)
    mma_f(k, opt)
    k.label(f"END_{k.name}")
    k("s_endpgm")
    return k

SC = 131072
SC_PART = SC + 16384

def loader(k, opt):
    k.stamps.reset(1)
    k(f"""
    s_setprio {opt.get("k1_lprio", 0)}
    s_and_b32 s54, s3, 1
    v_and_b32 v22, 7, v0
    v_and_b32 v23, 24, v0
    v_lshlrev_b32 v20, 13, v23
    v_and_b32 v23, 32, v0
    v_lshl_or_b32 v20, v23, 5, v20
    v_xor_b32 v23, v22, v2
    v_lshl_or_b32 v4, v23, 4, v20
    v_xor_b32 v5, 64, v4
    v_add_u32 v5, 0x400, v5
    v_add_u32 v6, 0xff800, v4
    v_add_u32 v7, 0xff800, v5
    s_lshl_b32 s81, s58, 12
    s_lshl_b32 s63, s54, 19
    s_add_u32 s81, s81, s63
    s_mov_b32 s26, 0x200000
    s_mov_b32 s27, 0x20000
    s_mov_b32 s31, 0x20000
    s_lshl_b32 s73, s54, 13
    s_movk_i32 s57, 0x3ff
    s_mov_b32 s72, 0x1ffff
    s_mov_b32 s78, 0
    s_cmp_eq_u32 s60, 7
    s_cbranch_scc1 K1_LF
    """)
    snap = k.snapshot()
    for ty in "HF":
        H = ty == "H"
        if H:
            k(f"""
            v_lshrrev_b32 v27, 3, v1
            v_mul_u32_u24 v40, 0xe00, v27
            v_lshrrev_b32 v26, 3, v0
            v_and_b32 v26, 2, v26
            v_xor_b32 v26, v22, v26
            v_lshl_add_u32 v40, v26, 4, v40
            v_add_u32 v41, {32*3584 - 1024}, v40
            v_xor_b32 v42, 64, v40
            v_add_u32 v42, {8*3584 - 2048}, v42
            v_add_u32 v43, {32*3584 - 1024}, v42
            s_add_u32 s76, s59, s60
            s_and_b32 s76, s76, {0 if opt.get("k1_norot") else opt.get("k1_rotmask", 3)}
            s_lshl_b32 s76, s76, 8
            s_mul_i32 s70, s56, 7
            s_add_u32 s70, s60, s70
            s_lshl1_add_u32 s70, s70, s54
            s_lshl_b32 s70, s70, 7
            s_mov_b32 s30, 1835008
            """)
            k.wait_lg()
        else:
            k.label("K1_LF"); k.restore(snap)
            k(f"s_lshl_b32 s76, s59, 8\ns_lshl_b32 s70, s56, 17\ns_add_u32 s70, s70, s73")
            k.wait_lg()
            k(f"s_getpc_b64 s[28:29]\ns_add_u32 s28, s28, FB2@rel32@lo+4\ns_addc_u32 s29, s29, FB2@rel32@hi+12\ns_mov_b32 s30, 0x40000")
        def stage_x():
            if opt.get("x_nodma"): return
            if H: k("s_add_u32 s83, s76, s81\ns_mul_i32 s79, s76, 1792\ns_mov_b32 m0, s73")
            else: k("s_lshr_b32 s83, s76, 1\ns_and_b32 s83, s83, 0x180\ns_and_b32 s79, s76, 0x80\ns_lshl2_add_u32 s83, s79, s83\ns_add_u32 s83, s83, s81\ns_lshl_b32 s79, s76, 7\ns_mov_b32 m0, s73")
            k("s_add_u32 s79, s79, s70")
            for r in range(2):
                if r: k("s_add_u32 m0, s73, 0x1000\ns_add_u32 s83, s83, 0x40000")
                for i in range(4): k(f"buffer_load_dwordx4 v{4+i}, s[24:27], s83 offen offset:{1024*i} lds")
        def stage_w():
            if opt.get("x_nodma"): return
            for r in range(2):
                k(f"s_add_u32 m0, s73, {0x4000 + 0x1000*r}")
                if r: k(f"s_add_u32 s79, s79, {16*3584 if H else 4096}")
                else: k("s_addk_i32 s76, 128")
                for i in range(4): k(f"buffer_load_dwordx4 v{[40, 41, 42, 43][i] if H else 46}, s[28:31], s79 offen offset:{1024*i} lds")
            k("s_and_b32 s76, s76, s57\ns_add_u32 s73, s73, 0x8000\ns_and_b32 s73, s73, s72")
        stage_x(); stage_w(); stage_x()
        k._out("s_waitcnt vmcnt(8)"); k.S.vm = []
        k.barrier()
        stage_w()
        k.label(f"K1L_LOOP{ty}")
        stage_x(); stage_w()
        k._out(f"s_waitcnt vmcnt(16)"); k.S.vm = []
        k(f"s_add_u32 s78, s78, 1\ns_cmp_lt_u32 s78, 6")
        k.barrier()
        k(f"s_cbranch_scc1 K1L_LOOP{ty}")
        if H: k("s_branch K1L_TAIL")
    k.label("K1L_TAIL")
    k.stamps.mark()
    J = 52
    k(f"s_lshl1_add_u32 s55, s54, 0")
    jobs_setup(k, 0)
    jobs_loads(k, J, 0)
    k._out(f"s_waitcnt vmcnt(4)"); k.barrier()
    k(f"s_lshl1_add_u32 s55, s54, 1")
    jobs_setup(k, 1)
    jobs_loads(k, J + 16, 1)
    if opt.get("pf_code", 1):
        k("s_getpc_b64 s[22:23]")
        lab = k.newlabel("PC"); k.label(lab)
        k(f"s_and_b32 s63, s2, 0xf8\nv_min_u32 v26, 7, v1\nv_add_lshl_u32 v26, v26, s63, 7\ns_add_u32 s22, s22, k2_kernel-{lab}\ns_addc_u32 s23, s23, 0")
        k(f"v_min_u32 v26, CODE_END-k2_kernel-4, v26\nglobal_load_dword v8, v26, s[22:23]")
        if opt.get("pf_ctab", 1):
            k("s_getpc_b64 s[22:23]\ns_add_u32 s22, s22, CTAB@rel32@lo+4\ns_addc_u32 s23, s23, CTAB@rel32@hi+12\ns_lshr_b32 s63, s63, 1\nv_add_lshl_u32 v26, v21, s63, 7\nglobal_load_dword v9, v26, s[22:23]")
    k.barrier()
    k.barrier()
    k.stamps.mark()
    jobs_finish(k, opt, J)
    k.stamps.mark()
    k.stamps.n = 4
    k.stamps.flush(9)

def stat_worker(k, opt):
    k.stamps.reset(1)
    TM = 20
    k(f"s_and_b32 s54, s3, 1\ns_lshl_b32 s63, s54, 6\nv_add_u32 v25, s63, v1\nv_lshlrev_b32 v26, 3, v25\nv_add_u32 v26, {SC}, v26\nv_lshlrev_b32 v27, 2, v25\nv_add_u32 v27, {SC + 1024}, v27")
    if opt.get("pf_code", 1):
        k("s_getpc_b64 s[22:23]")
        lab = k.newlabel("PC"); k.label(lab)
        k(f"s_and_b32 s63, s2, 0xf8\nv_min_u32 v8, 7, v1\nv_add_lshl_u32 v8, v8, s63, 6\nv_and_b32 v8, 0xffffff80, v8\ns_add_u32 s22, s22, k1_kernel-{lab}\ns_addc_u32 s23, s23, -1")
        k(f"v_lshl_add_u32 v8, s54, 14, v8\nv_min_u32 v8, CODE_END-k1_kernel-4, v8\nglobal_load_dword v9, v8, s[22:23]")
        k.S.vm = []
    k(f"v_mov_b32 v{TM}, 0\nv_mov_b32 v{TM+1}, 0\nds_write_b64 v26, {vr(TM, 2)} offset:{SC_PART - SC + 1024}")
    k.wait_lg()
    for i in range(9): k.barrier()
    for nc in range(2): k(f"ds_read_b64 {vr(TM + 2*nc, 2)}, v26 offset:{SC_PART - SC + 1024*nc}")
    for e in range(2): k(f"v_add_f32 v{TM+e}, v{TM+e}, v{TM+2+e}")
    stats_math(k, [(TM, TM+1)], lambda i: (TM + 2, TM + 4))
    k(f"v_mul_f32 v{TM+3}, {fx(-LOG2E)}, v{TM+4}\nds_write_b32 v27, v{TM+4}\nds_write_b64 v26, {vr(TM+2, 2)}")
    k.wait_lg(); k.barrier()

def stats_publish(SUM, GRAM, T, nt):
    o = []
    for t in range(nt): o += [f"v_cndmask_b32 v{T+2*t+1}, v{GRAM+4*t}, v{GRAM+4*t+1}, s[94:95]", f"v_mov_b32 v{T+2*t}, v{SUM+4*t}"]
    for t in range(nt): o += [f"v_cndmask_b32 v{T+2*t+1}, v{T+2*t+1}, v{GRAM+4*t+2}, s[96:97]"]
    for t in range(nt): o += [f"v_cndmask_b32 v{T+2*t+1}, v{T+2*t+1}, v{GRAM+4*t+3}, s[98:99]"]
    o += [f"ds_write_b64 v13, {vr(T+2*t, 2)} offset:{128*t}" for t in range(nt)]
    return o
def stats_setup(k, ONES):
    k(f"v_cmp_eq_u32 s[94:95], 1, v21\nv_cmp_eq_u32 s[96:97], 2, v21\nv_cmp_eq_u32 s[98:99], 3, v21")
    k(f"s_mov_b32 vcc_lo, 0x00f0000f\ns_mov_b32 vcc_hi, 0xf0000f00\ns_add_u32 s63, s63, {SC_PART}\nv_lshl_add_u32 v13, v3, 3, s63")
    k(f"v_lshlrev_b32 v27, 3, v1\nv_add_u32 v27, {SC_PART + 2048}, v27\nv_cndmask_b32 v13, v27, v13, vcc")
    k(f"v_mov_b32 v{ONES}, 0x3f803f80")
    for i in range(1, 4): k(f"v_mov_b32 v{ONES+i}, v{ONES}")

def jobs_setup(k, u):
    k(f"""
    s_lshl1_add_u32 s63, s2, s54
    s_and_b32 s69, s63, 7
    s_lshr_b32 s63, s63, 3
    s_lshl1_add_u32 s63, s63, {u}
    s_and_b32 s64, s63, 3
    s_and_b32 s65, s63, 12
    s_lshl4_add_u32 s64, s65, s64
    s_and_b32 s65, s63, 32
    s_lshl3_add_u32 s64, s65, s64
    s_lshr_b32 s65, s63, 6
    s_lshl3_add_u32 s64, s65, s64
    s_and_b32 s65, s63, 16
    s_lshl2_add_u32 s64, s64, s65
    s_mulk_i32 s64, 257
    s_lshl4_add_u32 s64, s69, s64
    s_lshl4_add_u32 s64, s69, s64
    s_lshl_b32 s64, s64, 1
    s_add_u32 s64, s64, 2
    s_lshl_b32 s69, s69, 12
    s_add_u32 s69, s69, s63
    s_lshl_b32 s69, s69, 6
    s_add_u32 s{84+4*u}, s69, {WS_WT}
    s_lshr_b32 s65, s2, 2
    s_and_b32 s66, s2, 3
    s_lshl2_add_u32 s67, s66, s55
    s_lshl_b32 s67, s67, 6
    s_lshl_b32 s63, s65, 15
    s_add_u32 s67, s67, s63
    s_mul_i32 s66, s66, 56
    s_add_u32 s66, s66, s65
    s_lshl2_add_u32 s66, s66, s55
    s_lshl_b32 s66, s66, 11
    s_add_u32 s66, s66, {WS_W2P}
    s_cmpk_lt_u32 s2, 224
    s_cselect_b32 s{86+4*u}, s66, {FAR}
    s_add_u32 s65, s67, 0x4000
    """)
    if u: return
    k(f"""
    s_mov_b32 s46, 1052672
    s_mov_b32 s47, 0x20000
    s_mov_b32 s50, 1052672
    s_mov_b32 s51, 0x20000
    s_mov_b32 s42, 1835008
    s_mov_b32 s43, 0x20000
    s_mul_i32 s53, s54, 0x1800
    s_add_u32 s53, s53, {SC + 20480}
    v_bfe_u32 v24, v0, 2, 2
    v_lshl_add_u32 v32, v24, 6, v2
    v_mul_u32_u24 v32, 514, v32
    v_lshl_add_u32 v32, v21, 4, v32
    v_lshrrev_b32 v12, 2, v1
    v_lshlrev_b32 v33, 10, v12
    v_lshl_add_u32 v33, v21, 4, v33
    v_add_u32 v39, s53, v46
    v_lshlrev_b32 v37, 6, v12
    v_lshl_add_u32 v37, v21, 3, v37
    v_add_u32 v37, s53, v37
    v_lshl_add_u32 v38, v2, 8, v37
    v_lshlrev_b32 v27, 4, v2
    v_lshl_add_u32 v27, v3, 7, v27
    v_add_u32 v27, s53, v27
    v_lshrrev_b32 v36, 3, v1
    v_lshlrev_b32 v36, 13, v36
    v_lshl_add_u32 v36, v22, 4, v36
    """)
def jobs_loads(k, J, u):
    k(f"buffer_load_dwordx4 {vr(J)}, v32, s[44:47], s64 offen\nbuffer_load_dwordx4 {vr(J + 4)}, v32, s[48:51], s64 offen")
    k(f"buffer_load_dwordx4 {vr(J + 8)}, v33, s[40:43], s67 offen\nbuffer_load_dwordx4 {vr(J + 12)}, v33, s[40:43], s65 offen")
def jobs_finish(k, opt, J):
    SW = opt.get("k1_storew", "sc1")
    for u in range(2):
        j = J + 16*u
        for pl in range(2): k(f"ds_write_b128 v39, {vr(j + 4*pl)} offset:{1024*pl}")
        for ch in range(2):
            k(f"ds_read_b64_tr_b16 {vr(j + 4*ch, 2)}, v37 offset:{32*ch}\nds_read_b64_tr_b16 {vr(j + 2 + 4*ch, 2)}, v37 offset:{32*ch + 1024}")
        for pl in range(2): k(f"ds_write_b128 v39, {vr(j + 8 + 4*pl)} offset:{1024*pl}")
        for ch in range(2):
            k(f"ds_read_b64_tr_b16 {vr(j + 8 + 4*ch, 2)}, v38 offset:{32*ch}\nds_read_b64_tr_b16 {vr(j + 10 + 4*ch, 2)}, v38 offset:{32*ch + 256}")
        for ch in range(2): k(f"ds_write_b128 v27, {vr(j + 4*ch)} offset:{2048 + 2048*ch + 64*u}")
        for e in range(2): k(f"buffer_store_dwordx4 {vr(j + 8 + 4*e)}, v46, s[36:39], s{86+4*u} offen offset:{1024*e} {SW}")
    for e in range(4): k(f"ds_read_b128 {vr(J + 32 + 4*e)}, v39 offset:{2048 + 1024*e}")
    for e in range(4):
        k(f"buffer_store_dwordx4 {vr(J + 32 + 4*e)}, v36, s[36:39], s84 offen {SW}")
        if e < 3: k("s_add_u32 s84, s84, 0x10000")

def stats_math(k, regs, outs):
    k(f"s_mov_b32 s92, {fx(1/512)}\ns_mov_b32 s93, 0xffff0000\ns_mov_b32 s91, {fx(1e-5)}")
    seq = ["v_mul_f32 v{S}, s92, v{S}", "v_mul_f32 v{G}, s92, v{G}", "v_fma_f32 v{G}, -v{S}, v{S}, v{G}", "v_max_f32 v{G}, 0, v{G}",
           "v_cvt_pk_bf16_f32 v{G}, v{G}, -v{S}", "NM", "v_lshlrev_b32 v{G}, 16, v{G}", "v_add_f32 v{G}, s91, v{G}",
           "v_cvt_pk_bf16_f32 v{G}, v{G}, v{G}", "v_lshlrev_b32 v{G}, 16, v{G}", "v_sqrt_f32 v{G}, v{G}",
           "v_cvt_pk_bf16_f32 v{G}, v{G}, v{G}", "v_lshlrev_b32 v{G}, 16, v{G}", "v_rcp_f32 v{R}, v{G}"]
    for ins in seq:
        for i, (S, G) in enumerate(regs):
            nm, rr = outs(i)
            if ins == "NM":
                if nm is not None: k(f"v_and_b32 v{nm}, s93, v{G}")
            else: k(ins.format(S=S, G=G, R=rr))

def xread_addr(k):
    k("""
    s_and_b32 s54, s3, 1
    s_lshr_b32 s55, s3, 1
    s_lshl_b32 s74, s54, 13
    v_lshrrev_b32 v23, 1, v3
    v_xor_b32 v23, v23, v2
    v_lshl_add_u32 v20, v3, 7, s74
    v_lshl_add_u32 v44, v23, 4, v20
    v_xor_b32 v45, 64, v44
    """)

def mma_h(k, opt):
    ST = opt.get("k1_store", "sc1")
    k.stamps.reset(1)
    XF, BF, ACC, CSA, SUM, GRAM, ONES, REC, T = 52, 84, 116, 180, 188, 204, 220, 224, 232
    CS = 52
    xread_addr(k)
    k(f"""
    v_bfe_u32 v24, v0, 2, 2
    v_lshlrev_b32 v23, 11, v2
    v_lshl_add_u32 v23, v24, 7, v23
    v_lshl_add_u32 v23, v21, 3, v23
    s_mul_i32 s63, s55, 0x2400
    s_addk_i32 s63, 0x4000
    v_add_u32 v23, s63, v23
    s_lshl_b32 s63, s55, 6
    v_xor_b32 v44, s63, v44
    v_xor_b32 v45, s63, v45
    s_movk_i32 s79, 0x400
    v_bfe_u32 v26, v0, 3, 2
    s_lshl_b32 s61, s55, 8
    s_add_u32 s61, s61, {SC + 1536}
    v_lshl_add_u32 v28, v2, 4, s61
    s_lshl_b32 s62, s54, 1
    """)
    for c in range(4):
        k(f"s_xor_b32 s78, s62, {c}\nv_xor_b32 v27, s78, v26\nv_lshl_add_u32 v{4+c}, v27, 5, v23\nv_xor_b32 v{8+c}, s79, v{4+c}")
        k(f"s_mul_i32 s77, s78, 0x1200\ns_and_b32 s{84+c}, s77, 0x2200\ns_add_u32 s{88+c}, s{84+c}, {56*8192}")
        if c % 2 == 0: k(f"v_lshl_add_u32 v{48+c//2}, s78, 6, v28")
    k("s_lshl1_add_u32 s63, s55, s54\ns_lshl_b32 s63, s63, 9")
    stats_setup(k, ONES)
    for i in range(ACC, GRAM + 16): k(f"v_mov_b32 v{i}, 0")
    k(f"""
    v_and_b32 v18, 16, v0
    v_lshlrev_b32 v18, 8, v18
    v_and_b32 v26, 32, v0
    v_lshl_or_b32 v18, v26, 3, v18
    v_lshl_or_b32 v18, v3, 4, v18
    s_mul_i32 s70, s56, 7
    s_add_u32 s60, s60, s70
    s_and_b32 s63, s58, 12
    s_add_u32 s63, s63, s62
    s_mul_i32 s63, s63, 28
    s_lshl1_add_u32 s63, s60, s63
    s_add_u32 s63, s63, s55
    s_and_b32 s62, s58, 3
    s_lshl4_add_u32 s63, s63, s62
    s_lshl_b32 s63, s63, 10
    v_add_u32 v18, s63, v18
    s_lshl_b32 s63, s54, 9
    s_add_u32 s63, s63, {SC}
    v_lshl_add_u32 v17, v3, 3, s63
    s_mov_b32 s77, 0x10000
    s_mov_b32 s78, 0
    """)
    def rd(h, odd):
        o = [f"ds_read_b128 {vr(XF + 16*h + 4*t)}, v{44+h} offset:{2048*t + 32768*odd}" for t in range(4)]
        for c in range(4):
            d = BF + 16*h + 4*c
            o += [f"ds_read_b64_tr_b16 {vr(d, 2)}, v{4+4*h+c} offset:{32768*odd}", f"ds_read_b64_tr_b16 {vr(d+2, 2)}, v{4+4*h+c} offset:{512 + 32768*odd}"]
        if opt.get("x_noread"): return []
        return [o[0], o[4], o[5], o[1], o[2], o[3]] + o[6:]
    def mm(h, fill):
        seq = [(ACC + 16*c + 4*t, BF + 16*h + 4*c, XF + 16*h + 4*t) for c in range(4) for t in range(4)]
        seq += [(CSA + 4*c, BF + 16*h + 4*c, ONES) for c in range(2)]
        if h == 0:
            st = []
            for t in range(4): st += [(SUM + 4*t, ONES, XF + 4*t), (GRAM + 4*t, XF + 4*t, XF + 4*t)]
            seq = seq[:4] + st + seq[4:]
        for n, (d, a, b) in enumerate(seq):
            if not opt.get("x_nomfma"): mfma(k, vr(d), vr(a), vr(b))
            fill.pop(k, 1 if n < 17 else 2)
        fill.flush(k)
    k.stamps.mark()
    k.wait_lg()
    k.barrier()
    if opt.get("stamps") == 3:
        k._out("s_memtime s[14:15]"); k._out("s_memrealtime s[16:17]"); k._out("s_waitcnt lgkmcnt(0)")
    for i in rd(0, 0): k(i)
    k.label("K1H_LOOP")
    f = Merge()
    for odd in range(2):
        if odd:
            xa = [f"v_xor_b32 v{x}, s77, v{x}" for x in (44, 4, 5, 6, 7)]
            xb = [f"v_xor_b32 v{x}, s77, v{x}" for x in (45, 8, 9, 10, 11)]
            r = rd(1, odd)
            f.add(*[a + "\n" + b for a, b in zip(r[:5], xa)], *r[5:], *xb, *stats_publish(SUM, GRAM, T, 4))
        else: f.add(*rd(1, odd))
        mm(0, f)
        k.wait_lg(); k.barrier()
        f.add(*rd(0, 1 - odd))
        if odd: f.add("s_add_u32 s78, s78, 1\ns_cmp_lt_u32 s78, 4")
        mm(1, f)
    k("s_cbranch_scc1 K1H_LOOP")
    if opt.get("stamps") == 3:
        k._out("s_memtime s[10:11]"); k._out("s_memrealtime s[12:13]"); k._out("s_waitcnt lgkmcnt(0)")
        k._out("s_sub_u32 s10, s10, s14"); k._out("s_sub_u32 s11, s12, s16")
    k.stamps.mark()
    k(f"s_mov_b32 exec_lo, 0x10001\ns_mov_b32 exec_hi, 0x10001\nds_write_b128 v48, {vr(CSA)}\nds_write_b128 v48, {vr(CSA+4)} offset:64\ns_mov_b64 exec, -1")
    k.wait_lg(); k.barrier()
    for t in range(4): k(f"ds_read_b64 {vr(REC + 2*t, 2)}, v17 offset:{128*t}")
    for c in range(2): k(f"ds_read_b128 {vr(CS + 4*c)}, v49 offset:{64*c}")
    k.stamps.mark()
    if opt.get("x_twice"): k("s_mov_b32 s19, 0"); k.wait_lg(); k.label("TWICE"); k("s_mov_b32 s7, s22")
    n = 0
    for c in range(4):
        cs = CSA + 4*c if c < 2 else CS + 4*(c - 2)
        for rwl in range(2):
            A = ACC + 16*c + 8*rwl
            tb = BF + 12*(n & 1); n += 1
            pk = tb + 8
            pr = [(tau, p) for tau in range(2) for p in range(2)]
            R = lambda tau: REC + 4*rwl + 2*tau
            for tau, p in pr: k(f"v_pk_fma_f32 {vr(A+4*tau+2*p, 2)}, {vr(R(tau), 2)}, {vr(cs+2*p, 2)}, {vr(A+4*tau+2*p, 2)} op_sel_hi:[0,1,1]")
            for tau, p in pr: k(f"v_pk_mul_f32 {vr(A+4*tau+2*p, 2)}, {vr(A+4*tau+2*p, 2)}, {vr(R(tau), 2)} op_sel:[0,1] op_sel_hi:[1,1]")
            for e in range(8): k(f"v_exp_f32 v{tb+e}, v{A+e}")
            for e in range(4): k(f"v_pk_add_f32 {vr(tb+2*e, 2)}, {vr(tb+2*e, 2)}, 1.0 op_sel_hi:[1,0]")
            for e in range(8): k(f"v_rcp_f32 v{tb+e}, v{tb+e}")
            for e in range(4): k(f"v_pk_mul_f32 {vr(A+2*e, 2)}, {vr(A+2*e, 2)}, {vr(tb+2*e, 2)}")
            for e in range(4): k(f"v_cvt_pk_bf16_f32 v{pk+e}, v{A+2*e}, v{A+2*e+1}")
            k(f"v_permlane16_swap_b32 v{pk}, v{pk+2}\nv_permlane16_swap_b32 v{pk+1}, v{pk+3}")
            k(f"buffer_store_dwordx4 {vr(pk)}, v18, s[36:39], s{84+4*rwl+c} offen {ST}")
    k.stamps.mark()
    if opt.get("x_twice"): k("s_add_u32 s19, s19, 1\ns_cmp_lt_u32 s19, 2\ns_cbranch_scc1 TWICE")
    k.stamps.n = 5 if opt.get("stamps") != 3 else 8
    k.stamps.flush(0)

def mma_f(k, opt):
    ST = opt.get("k1_storey", "sc1")
    k.stamps.reset(1)
    ONES, T, XL, U, BF, SUM, GRAM, ACC = 0, 4, 16, 32, 48, 112, 120, 128
    RR = 32
    k(f"""
    s_lshl_b32 s74, s3, 12
    v_lshrrev_b32 v23, 1, v3
    v_xor_b32 v23, v23, v2
    v_lshl_add_u32 v8, v3, 7, s74
    v_lshl_add_u32 v8, v23, 4, v8
    v_xor_b32 v9, 64, v8
    v_add_u32 v12, 0x4000, v46
    v_lshrrev_b32 v26, 3, v1
    v_lshlrev_b32 v11, 14, v26
    v_sub_u32 v26, v21, v26
    v_and_b32 v26, 3, v26
    v_lshl_or_b32 v11, v26, 4, v11
    v_and_b32 v26, 4, v0
    v_lshl_or_b32 v11, v26, 4, v11
    s_and_b32 s63, s58, 12
    s_add_u32 s63, s63, s3
    s_and_b32 s84, s58, 3
    s_lshl2_add_u32 s63, s63, s84
    s_lshl_b32 s63, s63, 7
    s_xor_b32 s84, s56, 1
    s_lshl_b32 s84, s84, 13
    s_add_u32 s84, s84, s63
    s_add_u32 s84, s84, {WS_Y1}
    s_lshl_b32 s53, s3, 11
    s_add_u32 s53, s53, {SC + 8192}
    v_lshrrev_b32 v26, 1, v3
    v_add_u32 v26, v26, v2
    v_and_b32 v26, 3, v26
    v_lshl_add_u32 v14, v3, 6, s53
    v_lshl_add_u32 v14, v26, 4, v14
    v_add_u32 v15, s53, v46
    s_mov_b32 s85, 0x20000
    s_lshl_b32 s63, s3, 7
    s_add_u32 s63, s63, {SC + 1024}
    v_lshl_add_u32 v10, v2, 4, s63
    s_mov_b32 s88, 0xffff0000
    s_lshl_b32 s86, s56, 31
    s_or_b32 s86, s86, 1.0
    s_mov_b32 s77, 0x10000
    s_mov_b32 s78, 0
    s_lshl_b32 s63, s3, 8
    """)
    stats_setup(k, ONES)
    for i in range(U + 8, ACC + 128, 2): k(f"v_pk_mov_b32 {vr(i, 2)}, 0, 0")
    def make_u(h):
        o = [f"ds_read_b128 {vr(XL + 8*t + 4*hi)}, v{8+h} offset:{2048*t + 32768*hi}" for t in range(2) for hi in range(2)]
        o += ["s_nop 0"]*2
        for t in range(2):
            for e in range(4):
                a, b = XL + 8*t + e, XL + 8*t + 4 + e
                o += [f"v_lshlrev_b32 v{T}, 16, v{a}", f"v_and_b32 v{T+1}, s88, v{a}", f"v_lshlrev_b32 v{T+2}, 16, v{b}", f"v_and_b32 v{T+3}, s88, v{b}",
                      f"v_fmac_f32 v{T}, s86, v{T+2}", f"v_fmac_f32 v{T+1}, s86, v{T+3}", f"v_cvt_pk_bf16_f32 v{U+8*h+4*t+e}, v{T}, v{T+1}"]
        return o
    def stat():
        for t in range(2):
            for hi in range(2):
                x = vr(XL + 8*t + 4*hi)
                yield (SUM + 4*t, vr(ONES), x); yield (GRAM + 4*t, x, x)
    def mm(h, f, nxt, stats, bar=False):
        st = list(stat()) if stats else []
        for c in range(16):
            if bar and c == 8:
                while (len(f.q) % 7) != 0: f.pop(k, 1)
                for i in stats_publish(SUM, GRAM, T, 2): k(i)
            if bar and c == 10:
                k.wait_lg(n=2); k.barrier()
            for t in range(2):
                mfma(k, vr(ACC + 8*c + 4*t), vr(U + 8*h + 4*t), vr(BF + 4*c))
                f.pop(k, 2)
            if nxt is not None: k(f"ds_read_b128 {vr(BF + 4*c)}, v12 offset:{nxt + 1024*c}")
            if c >= 2 and st:
                for _ in range(2):
                    d, a, b = st.pop(0); mfma(k, vr(d), a, b); f.pop(k, 2)
        f.flush(k)
    k.stamps.mark()
    k.wait_lg()
    k.barrier()
    k.label("K1F_LOOP")
    k.barrier()
    f = Merge(); f.add(*make_u(0))
    mm(1, f, 0, True)
    f.add(*make_u(1))
    mm(0, f, 32768, True, bar=True)
    k(f"v_xor_b32 v8, s77, v8\nv_xor_b32 v9, s77, v9\nv_xor_b32 v12, s77, v12\ns_add_u32 s78, s78, 1\ns_cmp_lt_u32 s78, 4")
    k.wait_lg()
    k("s_cbranch_scc1 K1F_LOOP")
    k.stamps.mark()
    k.barrier()
    for t in range(2): k(f"ds_read_b128 {vr(RR + 4*t)}, v10 offset:{64*t}")
    k.stamps.mark()
    def unit(c):
        A = ACC + 8*c
        par = c & 1
        tb = XL + 8*par
        pk = tb + 4
        o = [f"v_pk_mul_f32 {vr(A+2*e, 2)}, {vr(A+2*e, 2)}, {vr(RR+2*e, 2)}" for e in range(4)]
        o += [f"v_cvt_pk_bf16_f32 v{pk+e}, v{A+2*e}, v{A+2*e+1}" for e in range(4)]
        return o, f"ds_write_b128 v14, {vr(pk)} offset:{1024*par}\nds_read_b128 {vr(tb)}, v15 offset:{1024*par}", f"buffer_store_dwordx4 {vr(tb)}, v11, s[36:39], s84 offen {ST}\ns_add_u32 s84, s84, s85"
    pend = None
    LAG = 3
    for c in range(16 + LAG):
        f = Merge()
        if c >= LAG:
            a, b, st_ = unit(c - LAG)
            f.add(*a)
            if pend: f.add(pend)
            f.add(b); pend = st_
        if c < 16:
            for t in range(2):
                mfma(k, vr(ACC + 8*c + 4*t), vr(U + 8 + 4*t), vr(BF + 4*c))
                f.pop(k, 4)
        f.flush(k)
    k(pend)
    k.stamps.mark()
    k.stamps.n = 4
    k.stamps.flush(0)
```

```python
from k1 import *
from model import WS_P
XCH, FLG = 131072, 131072 + 8192

def build_k2(opt):
    k = Prog("k2_kernel", 256, 512, lds=FLG + 64, vgpr=256)
    ST = opt.get("k2_store", "sc1")
    k(f"""
    s_cmpk_ge_u32 s2, 256
    s_cbranch_scc1 END_{k.name}
    s_load_dwordx2 s[24:25], s[0:1], 64
    v_lshrrev_b32 v4, 6, v0
    v_and_b32 v1, 63, v0
    v_readfirstlane_b32 s3, v4
    v_lshlrev_b32 v5, 4, v1
    s_mov_b32 s26, 0x2000000
    s_mov_b32 s27, 0x20000
    s_bfe_u32 s56, s2, 0x20001
    s_and_b32 s58, s2, 1
    s_lshr_b32 s59, s2, 5
    s_lshl3_add_u32 s58, s58, s59
    s_bfe_u32 s60, s2, 0x20003
    v_mov_b32 v6, {FLG}
    """)
    if opt.get("stamps"): k("s_load_dwordx2 s[20:21], s[0:1], 64")
    k(f"v_mov_b32 v8, 0\nv_and_b32 v9, 15, v0\nv_lshl_add_u32 v9, v9, 2, v6\nds_write_b32 v9, v8")
    k._out("s_waitcnt lgkmcnt(0)"); k.S.lg = []; k.S.smem = []
    k.barrier()
    k("s_cmp_lt_u32 s3, 2\ns_cbranch_scc1 FFT_WAVE\ns_cmp_lt_u32 s3, 6\ns_cbranch_scc1 GEMM_WAVE")
    snap = k.snapshot()
    AH = opt.get("k2_ahead", 2)
    k(f"""
    s_setprio {opt.get('k2_lprio', 3)}
    s_and_b32 s54, s3, 1
    s_cmp_eq_u32 s54, 0
    s_cselect_b32 s61, s58, s60
    s_cselect_b32 s62, 0, {WS_W2P}
    s_mul_i32 s63, s56, 14
    s_mul_i32 s61, s61, 56
    s_add_u32 s61, s61, s63
    s_lshl_b32 s61, s61, 13
    s_add_u32 s61, s61, s62
    s_add_u32 s62, s61, {14*8192}
    s_lshl1_add_u32 s63, s60, s59
    s_mul_i32 s63, s63, {opt.get("k2_rot", 0)}
    s_cmp_ge_u32 s63, 14
    s_cselect_b32 s64, 14, 0
    s_sub_u32 s63, s63, s64
    s_mov_b32 s64, s61
    s_lshl_b32 s63, s63, 13
    s_add_u32 s61, s61, s63
    s_lshl_b32 s73, s54, 13
    s_mov_b32 s72, 0x1ffff
    v_add_u32 v7, 16, v6
    v_lshl_add_u32 v6, s54, 2, v6
    """)
    def step():
        for hf in range(2):
            k("s_mov_b32 m0, s73\ns_addk_i32 s73, 0x3000" if hf else "s_mov_b32 m0, s73\ns_addk_i32 s73, 0x1000")
            for i in range(4): k(f"buffer_load_dwordx4 v5, s[24:27], s61 offen offset:{1024*i} lds")
            k(f"s_addk_i32 s61, 0x1000")
        k("s_and_b32 s73, s73, s72\ns_cmp_eq_u32 s61, s62\ns_cselect_b32 s61, s64, s61")
    step(); step()
    k._out("s_waitcnt vmcnt(8)"); k.S.vm = []
    k("v_mov_b32 v12, 1\nds_write_b32 v6, v12")
    for _ in range(AH - 1): step()
    k(f"s_mov_b32 s78, 2\ns_mov_b32 s79, {AH - 6}")
    k.label("K2L_LOOP")
    L = k.newlabel("FREE")
    k(f"s_cmp_lt_i32 s79, 1\ns_cbranch_scc1 {L}")
    spin_until(k, "s79", 7, "SPL", tmp_v=8, width=4)
    k.label(L)
    step()
    if opt.get("stamps") == 2:
        k._out("s_memrealtime s[10:11]"); k._out("s_waitcnt lgkmcnt(0)"); k._out("s_mov_b32 m0, s78"); k._out("s_nop 0"); k._out("v_writelane_b32 v251, s10, m0")
    k._out(f"s_waitcnt vmcnt({8*AH})"); k.S.vm = []
    if opt.get("stamps") == 2:
        k._out("s_memrealtime s[10:11]"); k._out("s_waitcnt lgkmcnt(0)"); k._out("v_writelane_b32 v250, s10, m0")
    k(f"v_mov_b32 v12, s78\nds_write_b32 v6, v12\ns_add_u32 s78, s78, 1\ns_add_u32 s79, s79, 1\ns_cmp_lt_u32 s78, {15 - AH}\ns_cbranch_scc1 K2L_LOOP")
    for i in range(AH):
        k._out(f"s_waitcnt vmcnt({8*(AH - 1 - i)})")
        k(f"v_mov_b32 v{12+i}, {15 - AH + i}\nds_write_b32 v6, v{12+i}")
    if opt.get("stamps") == 2:
        k(f"s_lshl_b32 s22, s2, 3\ns_add_u32 s22, s22, s3\ns_lshl_b32 s22, s22, 7\ns_add_u32 s22, s22, {STAMP + 65536*4}\nv_lshl_add_u32 v1, v1, 2, s22\ns_mov_b64 exec, 0xffff")
        k._out("global_store_dword v1, v250, s[20:21]"); k._out("global_store_dword v1, v251, s[20:21] offset:64")
        k.maxv = 251
    k("s_endpgm")

    k.label("GEMM_WAVE"); k.restore(snap)
    st = Stamps(k, opt.get('stamps'), 1, 240)
    ACC, OP = 32, 96
    k(f"""
    s_setprio {opt.get("k2_gprio", 2)}
    s_sub_u32 s3, s3, 2
    s_and_b32 s54, s3, 1
    s_lshr_b32 s55, s3, 1
    s_lshl_b32 s63, s54, 12
    v_add_u32 v8, s63, v5
    s_lshl_b32 s63, s55, 12
    s_addk_i32 s63, 0x2000
    v_add_u32 v9, s63, v5
    s_lshl_b32 s63, s3, 2
    s_add_u32 s63, s63, {FLG + 16}
    v_mov_b32 v7, s63
    s_lshl1_add_u32 s63, s58, s54
    s_lshl_b32 s64, s56, 5
    s_add_u32 s63, s63, s64
    s_lshl1_add_u32 s64, s60, s55
    s_lshl3_add_u32 s63, s63, s64
    s_lshl_b32 s63, s63, 13
    s_add_u32 s61, s63, {WS_P}
    s_add_u32 s62, s61, 0x1000
    s_mov_b32 s71, 0x8000
    s_mov_b32 s72, 0x1ffff
    s_mov_b32 s78, 1
    """)
    for i in range(ACC, ACC + 64, 2): k(f"v_pk_mov_b32 {vr(i, 2)}, 0, 0")
    st.mark()
    def rd(p, off):
        o = []
        for i in range(4):
            o += [f"ds_read_b128 {vr(OP + 32*p + 16 + 4*i)}, v9 offset:{off + 1024*i}", f"ds_read_b128 {vr(OP + 32*p + 4*i)}, v8 offset:{off + 1024*i}"]
        return [o[0], o[1], o[3], o[5], o[7], o[2], o[4], o[6]]
    spin_until(k, "1", 6, "SPG", tmp_v=12, width=2, sleep=1)
    for i in rd(0, 0): k(i)
    k(f"ds_read_b64 {vr(12, 2)}, v6")
    FC = opt.get("k2_fc", 4)
    slow = []
    k.label("K2G_LOOP")
    for p in range(2):
        n = 0
        f = Merge()
        for c in range(4):
            for T in range(4):
                mfma(k, vr(ACC + 16*c + 4*T), vr(OP + 32*p + 16 + 4*c), vr(OP + 32*p + 4*T))
                if n == 0: k(f"v_mov_b32 v11, s78\ns_add_u32 s78, s78, 1\ns_min_u32 s79, s78, 14")
                if n == 1 and p == 1: k("v_add_u32 v8, s71, v8\nv_add_u32 v9, s71, v9")
                if n == 2 and p == 1: k("v_and_b32 v8, s72, v8\nv_and_b32 v9, s72, v9")
                if n == FC: k("v_min_u32 v12, v12, v13\nds_write_b32 v7, v11")
                if n == FC + 1: k("v_readfirstlane_b32 s52, v12")
                if n == FC + 2:
                    Ls, Lb = k.newlabel("SLOW"), k.newlabel("BACK")
                    k(f"s_cmp_lt_u32 s52, s79\ns_cbranch_scc1 {Ls}")
                    k.label(Lb); slow.append((Ls, Lb))
                    if opt.get("stamps") == 2:
                        k._out("s_memrealtime s[10:11]"); k._out("s_waitcnt lgkmcnt(0)"); k._out("s_mov_b32 m0, s78"); k._out("s_nop 0"); k._out("v_writelane_b32 v250, s10, m0")
                    f.add(*rd(1 - p, 16384*(1 - p)), f"ds_read_b64 {vr(12, 2)}, v6")
                f.pop(k, 1)
                n += 1
        f.flush(k)
    k("s_cmp_lt_u32 s78, 15\ns_cbranch_scc1 K2G_LOOP")
    st.mark()
    for c in range(4):
        for e in range(2):
            pk = OP + 8*c + 4*e
            for i in range(4): k(f"v_cvt_pk_bf16_f32 v{pk+i}, v{ACC+16*c+8*e+2*i}, v{ACC+16*c+8*e+2*i+1}")
            k(f"buffer_store_dwordx4 {vr(pk)}, v5, s[24:27], s{61 + c//2} offen offset:{2048*(c & 1) + 1024*e} {ST}")
    st.mark()
    if opt.get("stamps") == 2:
        k(f"s_lshl_b32 s22, s2, 3\ns_add_u32 s22, s22, s3\ns_lshl_b32 s22, s22, 7\ns_add_u32 s22, s22, {STAMP + 65536*4}\nv_lshl_add_u32 v1, v1, 2, s22\ns_mov_b64 exec, 0xffff")
        k._out("global_store_dword v1, v250, s[20:21]"); k("s_mov_b64 exec, -1")
    st.flush(0)
    k("s_endpgm")
    for Ls, Lb in slow:
        k.label(Ls)
        k._out("s_sleep 1"); k._out("ds_read_b64 v[12:13], v6"); k._out("s_waitcnt lgkmcnt(0)"); k._out("v_min_u32 v12, v12, v13"); k._out("s_nop 0")
        k._out("v_readfirstlane_b32 s52, v12"); k._out("s_nop 3"); k._out("s_cmp_lt_u32 s52, s79"); k._out(f"s_cbranch_scc1 {Ls}"); k._out(f"s_branch {Lb}")

    k.label("FFT_WAVE"); k.restore(snap)
    st = Stamps(k, opt.get('stamps'), 3, 240)
    if opt.get("x_nofft"): k("s_endpgm")
    CT, EO, Z, D0, OPS, TW, WR, TM = 16, 64, 72, 120, 152, 176, 208, 224
    def cf(kind, fn, u): return vr(CT + 4*({"E": 0, "O": 4, "Op": 8}[kind] + 2*fn + u))
    def D(q, c): return D0 + (q*2 + c)*4
    k(f"""
    s_setprio {opt.get('k2_fftprio0', 1)}
    s_lshl_b32 s61, s2, 13
    s_add_u32 s62, s61, {WS_Y1}
    s_add_u32 s63, s62, 0x1000
    s_getpc_b64 s[28:29]
    s_add_u32 s28, s28, CTAB@rel32@lo+4
    s_addc_u32 s29, s29, CTAB@rel32@hi+12
    s_movk_i32 s30, 0x4000
    s_mov_b32 s31, 0x20000
    s_lshl_b32 s66, s3, 10
    s_add_u32 s67, s66, 0x3000
    s_cmpk_eq_u32 s2, 255
    s_cselect_b32 s67, s66, s67
    s_add_u32 s64, s61, s66
    s_add_u32 s64, s64, {WS_WT}
    s_add_u32 s65, s64, 0x1000
    """)
    if opt.get("k2_touch", 0):
        k(f"v_lshlrev_b32 v8, 7, v1\ns_mul_i32 s77, s3, {WS_WT - WS_Y1}\ns_add_u32 s77, s77, s62\nbuffer_load_dword v236, v8, s[24:27], s77 offen")
    k("v_and_b32 v7, 60, v1\nv_lshlrev_b32 v7, 5, v7\nv_and_b32 v4, 3, v1\nv_lshl_or_b32 v7, v4, 4, v7")
    def first_loads():
        for pl in range(0 if opt.get("x_noz") else 2):
            for tb in range(4): k(f"buffer_load_dwordx4 {vr(Z + 16*pl + 4*tb)}, v7, s[24:27], s{62 + tb//2} offen offset:{2048*(tb & 1) + 64*pl}")
        for fn in range(0 if opt.get("x_noct") else 2): k(f"buffer_load_dwordx4 {vr(EO + 4*fn)}, v5, s[28:31], s67 offen offset:{2048*fn}")
    if not opt.get('k2_late', 1): first_loads()
    k("s_movk_i32 s68, 0x1000\ns_movk_i32 s69, 0x2000")
    def cload(i):
        if not opt.get("x_noct"): k(f"buffer_load_dwordx4 {vr(CT + 4*i)}, v5, s[28:31], {['0', 's68', 's69'][i // 4]} offen offset:{1024*(i % 4)}")
    st.mark()
    k(f"""
    s_setprio {opt.get('k2_fftprio', 0)}
    v_lshrrev_b32 v2, 4, v1
    v_and_b32 v3, 15, v1
    s_lshl_b32 s70, s3, 4
    v_add_u32 v8, s70, v3
    v_cvt_f32_u32 v8, v8
    v_mul_f32 v8, {fx(1/2048)}, v8
    v_mul_f32 v9, {fx(13.0)}, v8
    v_lshlrev_b32 v10, 2, v2
    v_cvt_f32_u32 v11, v10
    v_mul_f32 v11, v11, v8
    s_mov_b32 s71, 0x80008000
    s_mov_b32 s72, 0xffff0000
    """)
    for i in range(16):
        k(f"v_cos_f32 v{TW+2*i}, v11\nv_sin_f32 v{TW+2*i+1}, v11")
        if i < 15: k(f"v_add_f32 v11, v11, v{9 if i % 4 == 3 else 8}")
        if opt.get('k2_late', 1) and i == opt.get('k2_late_i', 7): first_loads()
    for i in range(8): cload(i)
    k(f"""
    v_add_u32 v10, s70, v10
    v_cvt_f32_u32 v10, v10
    v_cvt_f32_u32 v12, v3
    s_lshl_b32 s73, s3, 5
    s_xor_b32 s74, s73, 32
    v_cvt_f32_u32 v13, s73
    v_cvt_f32_u32 v14, s74
    v_add_f32 v13, v13, v12
    v_add_f32 v14, v14, v12
    v_mul_f32 v13, {fx(1/2048)}, v13
    v_mul_f32 v14, {fx(1/2048)}, v14
    s_lshl_b32 s75, s3, 31
    s_or_b32 s75, s75, 1.0
    s_xor_b32 s76, s75, 0x80000000
    s_mul_i32 s77, s3, 0x1008
    s_add_u32 s77, s77, {XCH}
    v_add_u32 v8, s77, v5
    v_xor_b32 v9, 0x1000, v8
    v_and_b32 v12, -9, v8
    s_lshl_b32 s77, s3, 2
    s_add_u32 s77, s77, {FLG + 32}
    v_mov_b32 v15, s77
    v_xor_b32 v7, 4, v15
    v_lshlrev_b32 v4, 8, v2
    v_lshl_add_u32 v4, v3, 3, v4
    s_lshl_b32 s77, s3, 11
    s_add_u32 s62, s61, s77
    s_add_u32 s62, s62, {WS_Y2}
    s_add_u32 s63, s62, 0x1000
    """)
    def mm(d, a, b, first): mfma(k, vr(d), a, b, first)
    def twmul(q, tw, fwd):
        for r in range(4):
            re, im, c, s = D(q, 0) + r, D(q, 1) + r, tw + 2*r, tw + 2*r + 1
            a, b = (re, im) if fwd else (im, re)
            k(f"v_mul_f32 v{TM+r}, v{a}, v{s}\nv_mul_f32 v{a}, v{a}, v{c}")
        for r in range(4):
            re, im, c, s = D(q, 0) + r, D(q, 1) + r, tw + 2*r, tw + 2*r + 1
            a, b = (re, im) if fwd else (im, re)
            k(f"v_fmac_f32 v{a}, v{b}, v{s}\nv_fma_f32 v{b}, v{b}, v{c}, -v{TM+r}")
    for i in range(16): k(f"v_xor_b32 v{Z+32+i}, s71, v{Z+i}")
    for tb in range(4):
        zr, zi, nzr = vr(Z + 4*tb), vr(Z + 16 + 4*tb), vr(Z + 32 + 4*tb)
        mm(D(tb, 0), zr, vr(EO), True);  mm(D(tb, 1), zi, vr(EO), True)
        mm(D(tb, 0), zi, vr(EO + 4), False); mm(D(tb, 1), nzr, vr(EO + 4), False)
    for u in range(0 if opt.get("x_now") else 4): k(f"buffer_load_dwordx4 {vr(WR + 4*u)}, v5, s[24:27], s{64 + u//2} offen offset:{2048*(u & 1)}")
    for i in range(8, 12): cload(i)
    def F2(kind, pl): return OPS + (kind*3 + pl)*4
    for q in range(4): twmul(q, TW + 8*q, True)
    for c in range(2):
        for tb in range(2):
            for h in range(2):
                a, b = D(tb, c) + 2*h, D(tb + 2, c) + 2*h
                tm = TM + 4 + 2*h
                k(f"v_add_f32 v{tm}, v{a}, v{b}\nv_add_f32 v{tm+1}, v{a+1}, v{b+1}\nv_sub_f32 v{b}, v{a}, v{b}\nv_sub_f32 v{b+1}, v{a+1}, v{b+1}")
                k(f"v_cvt_pk_bf16_f32 v{F2(0,c)+2*tb+h}, v{tm}, v{tm+1}\nv_cvt_pk_bf16_f32 v{F2(1,c)+2*tb+h}, v{b}, v{b+1}")
    for kind in range(2):
        for i in range(4): k(f"v_xor_b32 v{F2(kind,2)+i}, s71, v{F2(kind,0)+i}")
    fill = Merge()
    for se in range(2):
        for tb in range(2):
            if tb: fill.add(f"v_add_f32 v{13+se}, {fx(16/2048)}, v{13+se}")
            fill.add(f"v_mul_f32 v11, v10, v{13+se}")
            for r in range(4):
                i = (se*2 + tb)*4 + r
                fill.add(f"v_cos_f32 v{TW+2*i}, v11", f"v_sin_f32 v{TW+2*i+1}, v11")
                if r < 3: fill.add(f"v_add_f32 v11, v11, v{13+se}")
    for u in range(4):
        kind, cn = (0, "E") if u < 2 else (1, "O")
        xr, xi, nxr = vr(F2(kind, 0)), vr(F2(kind, 1)), vr(F2(kind, 2))
        for d, a, b, fs in ((0, 0, xr, True), (1, 0, xi, True), (0, 1, xi, False), (1, 1, nxr, False)):
            mm(D(u, d), cf(cn, a, u & 1), b, fs); fill.pop(k, 2)
    fill.flush(k)
    st.mark()
    for u in range(4):
        w = WR + 4*u
        for r in range(4):
            op = "v_and_b32 v%d, s72, v%d" if r & 1 else "v_lshlrev_b32 v%d, 16, v%d"
            k(op % (TM + r, w + (r >> 1))); k(op % (TM + 4 + r, w + 2 + (r >> 1)))
        for r in range(4):
            re, im = D(u, 0) + r, D(u, 1) + r
            k(f"v_mul_f32 v{TM+8+r}, v{im}, v{TM+4+r}\nv_mul_f32 v{im}, v{im}, v{TM+r}")
        for r in range(4):
            re, im = D(u, 0) + r, D(u, 1) + r
            k(f"v_fmac_f32 v{im}, v{re}, v{TM+4+r}\nv_fma_f32 v{re}, v{re}, v{TM+r}, -v{TM+8+r}")
        for h in range(2):
            re, im = D(u, 0) + 2*h, D(u, 1) + 2*h
            o = 2*(u & 1) + h
            k(f"v_cvt_pk_bf16_f32 v{F2(u>>1,0)+o}, v{re}, v{re+1}\nv_cvt_pk_bf16_f32 v{F2(u>>1,1)+o}, v{im}, v{im+1}")
    for kind in range(2):
        for i in range(4): k(f"v_xor_b32 v{F2(kind,2)+i}, s71, v{F2(kind,1)+i}")
    for par, cn in ((0, "E"), (1, "Op")):
        zr, zi, nzi = vr(F2(par, 0)), vr(F2(par, 1)), vr(F2(par, 2))
        for tb in range(2):
            q = tb + 2*par
            mm(D(q, 0), zr, cf(cn, 0, tb), True);  mm(D(q, 1), zi, cf(cn, 0, tb), True)
            mm(D(q, 0), nzi, cf(cn, 1, tb), False); mm(D(q, 1), zr, cf(cn, 1, tb), False)
    for tb in range(2):
        for c in range(2):
            for r in range(4):
                a, b = D(tb, c) + r, D(tb + 2, c) + r
                k(f"v_mul_f32 v{TM+r}, s75, v{b}")
            for r in range(4):
                a, b = D(tb, c) + r, D(tb + 2, c) + r
                k(f"v_sub_f32 v{b}, v{a}, v{TM+r}\nv_add_f32 v{a}, v{a}, v{TM+r}")
    for se in (1, 0):
        for tb in range(2):
            q = tb + 2*se
            twmul(q, TW + 8*(se*2 + tb), False)
            for c in range(2):
                pk = OPS + 4*q + 2*c
                k(f"v_cvt_pk_bf16_f32 v{pk}, v{D(q,c)}, v{D(q,c)+1}\nv_cvt_pk_bf16_f32 v{pk+1}, v{D(q,c)+2}, v{D(q,c)+3}")
                k(f"ds_write_b64 v{9 if se else 8}, {vr(pk, 2)} offset:{2048*tb + 1024*c}")
        if se == 1: k(f"v_mov_b32 v11, 1\nds_write_b32 v15, v11")
    spin_until(k, "1", 7, "SPF", tmp_v=11)
    F3 = Z
    for tb in range(2):
        for c in range(2): k(f"ds_read_b128 {vr(F3 + 12*tb + 4*c)}, v12 offset:{2048*tb + 1024*c}")
    for tb in range(2):
        for i in range(4): k(f"v_xor_b32 v{F3+12*tb+8+i}, s71, v{F3+12*tb+4+i}")
        tr, ti, nti = vr(F3 + 12*tb), vr(F3 + 12*tb + 4), vr(F3 + 12*tb + 8)
        for ta in range(2):
            q = 2*tb + ta
            mm(D(q, 0), cf("E", 0, ta), tr, True);  mm(D(q, 1), cf("E", 0, ta), ti, True)
            mm(D(q, 0), cf("E", 1, ta), nti, False); mm(D(q, 1), cf("E", 1, ta), tr, False)
    for tb in range(2):
        for ta in range(2):
            for c in range(2):
                a = D(2*tb + ta, c); pk = OPS + 2*((tb*2 + ta)*2 + c)
                k(f"v_cvt_pk_bf16_f32 v{pk}, v{a}, v{a+1}\nv_cvt_pk_bf16_f32 v{pk+1}, v{a+2}, v{a+3}")
                k(f"buffer_store_dwordx2 {vr(pk, 2)}, v4, s[24:27], s{62+c} offen offset:{1024*tb + 128*ta} {ST}")
    st.flush(0)
    k.label(f"END_{k.name}")
    k("s_endpgm")
    return k
```

```python
from k1 import *
from model import WS_P

def build_k3(opt):
    k = Prog("k3_kernel", 256, 384, lds=65536 + 64*144, vgpr=256)
    st = Stamps(k, opt.get('stamps'), 2, 240)
    k(f"""
    s_cmpk_ge_u32 s2, 256
    s_cbranch_scc1 END_{k.name}
    s_load_dwordx2 s[24:25], s[0:1], 64
    s_load_dwordx2 s[36:37], s[0:1], 0
    s_load_dwordx2 s[40:41], s[0:1], 48
    v_lshrrev_b32 v4, 6, v0
    v_and_b32 v1, 63, v0
    v_readfirstlane_b32 s3, v4
    s_mov_b32 s26, 0x2000000
    s_mov_b32 s27, 0x20000
    s_and_b32 s56, s2, 7
    s_lshr_b32 s59, s2, 6
    s_lshl2_add_u32 s58, s56, s59
    s_bfe_u32 s60, s2, 0x30003
    v_and_b32 v27, 7, v0
    """)
    if opt.get("stamps"): k("s_load_dwordx2 s[20:21], s[0:1], 64")
    st.mark()
    STG = 4
    k("s_cmp_lt_u32 s3, 4\ns_cbranch_scc1 K3_MMA")
    snap = k.snapshot()
    k(f"""
    v_lshrrev_b32 v26, 3, v1
    v_lshlrev_b32 v6, 12, v26
    v_and_b32 v26, 2, v26
    v_xor_b32 v26, v27, v26
    v_lshl_add_u32 v6, v26, 4, v6
    v_xor_b32 v7, 64, v6
    v_add_u32 v7, {32768 - 1024}, v7
    s_and_b32 s54, s3, 1
    s_lshl_b32 s62, s54, 16
    s_lshl_b32 s63, s58, 7
    s_add_u32 s62, s62, s63
    s_add_u32 s62, s62, {WS_Y2}
    s_lshl_b32 s75, s54, 11
    s_mov_b32 s64, 0x20000
    s_mov_b32 s65, 0x1fffff
    s_lshl_b32 s61, s60, {18 if opt.get("k3_rot", 0) else 31}
    s_and_b32 s61, s61, s65
    """)
    if opt.get("k3_touch", 0):
        k(f"s_mov_b32 s42, 0x200000\ns_mov_b32 s43, 0x20000\nbuffer_load_dword v8, off, s[40:43], 0")
    B1 = opt.get("k3_b1", [5, 11])
    for s in range(16):
        k("s_mov_b32 m0, s75\ns_add_u32 s63, s62, s61\ns_addk_i32 s75, 0x1000")
        k(f"buffer_load_dwordx4 v6, s[24:27], s63 offen lds\nbuffer_load_dwordx4 v7, s[24:27], s63 offen offset:1024 lds", tag=("Y", s))
        k("s_add_u32 s61, s61, s64\ns_and_b32 s61, s61, s65")
        if s in B1: k.wait_vm(tag=("Y", 4*B1.index(s) + 3)); k.barrier()
    for s in range(4*len(B1) + 3, 16, 4): k.wait_vm(tag=("Y", s)); k.barrier()
    k("s_endpgm")
    k.label("K3_MMA"); k.restore(snap)
    FB, ACC, BF, XG, TM, PP, G = 32, 96, 112, 144, 160, 184, 216
    k(f"""
    v_lshlrev_b32 v5, 4, v1
    s_lshl3_add_u32 s65, s58, s60
    s_lshl2_add_u32 s65, s65, s3
    s_lshl_b32 s65, s65, 11
    s_add_u32 s65, s65, {WS_P}
    s_mov_b32 s66, 0x200000
    v_and_b32 v26, 32, v0
    v_lshlrev_b32 v12, 5, v26
    v_and_b32 v26, 24, v0
    v_lshl_or_b32 v12, v26, 13, v12
    v_lshl_or_b32 v12, v27, 4, v12
    s_bfe_u32 s63, s58, 0x20001
    s_and_b32 s64, s58, 1
    s_lshl2_add_u32 s63, s64, s63
    s_lshr_b32 s64, s58, 3
    s_lshl4_add_u32 s63, s63, s64
    s_lshl2_add_u32 s63, s63, s3
    s_lshl_b32 s63, s63, 5
    s_add_u32 s63, s63, s60
    s_lshl_b32 s63, s63, 7
    s_mov_b32 s38, 0x200000
    s_mov_b32 s39, 0x20000
    s_mov_b32 s42, 0x200000
    s_mov_b32 s43, 0x20000
    """)
    for q in range(4):
        for e in range(2): k(f"buffer_load_dwordx4 {vr(PP + 8*q + 4*e)}, v5, s[24:27], s65 offen offset:{1024*e}")
        if q < 3: k("s_add_u32 s65, s65, s66")
    k(f"""
    v_lshrrev_b32 v2, 4, v1
    v_and_b32 v3, 15, v0
    s_lshl2_add_u32 s61, s60, s3
    v_lshl_add_u32 v8, s61, 4, v3
    v_cvt_f32_u32 v8, v8
    v_mul_f32 v8, {fx(-1/512)}, v8
    v_mul_f32 v9, {fx(13.0)}, v8
    v_mul_f32 v11, {fx(13.0 - 256.0)}, v8
    s_mul_i32 s68, s60, {2 if opt.get("k3_rot", 0) else 0}
    s_lshl4_add_u32 s69, s68, 1
    v_lshl_add_u32 v10, v2, 2, s69
    v_cvt_f32_u32 v10, v10
    v_mul_f32 v10, v10, v8
    """)
    gen = []
    for i in range(64):
        t = 16 + 2*(i & 3)
        gen += [f"v_cos_f32 v{t}, v10", f"v_sin_f32 v{t+1}, v10"]
        if i % 8 == 7 and i < 63: gen += [f"s_cmp_eq_u32 s68, {15 - i//4}\ns_cselect_b64 vcc, -1, 0\nv_cndmask_b32 v15, v9, v11, vcc\nv_add_f32 v10, v10, v15"]
        elif i < 63: gen += [f"v_add_f32 v10, v10, v{9 if i % 4 == 3 else 8}"]
        gen += [f"v_cvt_pk_bf16_f32 v{FB+i}, v{t}, v{t+1}"]
    for i in gen[:64]: k(i)
    k(f"""
    v_bfe_u32 v24, v0, 2, 2
    v_and_b32 v25, 3, v0
    v_lshl_add_u32 v24, v2, 3, v24
    v_lshlrev_b32 v24, 7, v24
    v_lshl_add_u32 v24, v25, 3, v24
    v_bfe_u32 v26, v0, 3, 2
    v_mul_u32_u24 v13, 144, v3
    v_lshl_add_u32 v13, v2, 3, v13
    s_lshl_b32 s64, s3, 5
    s_add_u32 s64, s64, 65536
    v_add_u32 v13, s64, v13
    v_lshrrev_b32 v14, 3, v1
    v_mul_u32_u24 v14, 144, v14
    v_lshl_add_u32 v14, v27, 4, v14
    s_mul_i32 s64, s3, 2304
    s_add_u32 s64, s64, 65536
    v_add_u32 v14, s64, v14
    s_mov_b32 s66, 0xffff0000
    s_mov_b32 s67, {fx(-0.6931471805599453)}
    """)
    for c in range(4): k(f"v_xor_b32 v25, {c}, v26\nv_lshl_add_u32 v{28+c}, v25, 5, v24")
    for i in gen[64:]: k(i)
    for e in range(2): k(f"buffer_load_dwordx4 {vr(XG + 4*e)}, v12, s[36:39], s63 offen offset:{2048*e}")
    st.mark()
    fill = Merge()
    for i in range(8):
        for q in range(4):
            lo, hi = (G + 2*i, G + 2*i + 1) if q == 0 else (TM + 2*(q & 1), TM + 2*(q & 1) + 1)
            fill.add(f"v_lshlrev_b32 v{lo}, 16, v{PP+8*q+i}", f"v_and_b32 v{hi}, s66, v{PP+8*q+i}")
            if q: fill.add(f"v_add_f32 v{G+2*i}, v{G+2*i}, v{lo}", f"v_add_f32 v{G+2*i+1}, v{G+2*i+1}, v{hi}")
    for e in range(16): fill.add(f"v_exp_f32 v{TM+e}, v{G+e}")
    for e in range(16): fill.add(f"v_mul_f32 v{G+e}, s67, v{G+e}")
    for e in range(16): fill.add(f"v_add_f32 v{TM+e}, 1.0, v{TM+e}")
    for e in range(16): fill.add(f"v_rcp_f32 v{TM+e}, v{TM+e}")
    for e in range(16): fill.add(f"v_mul_f32 v{G+e}, v{G+e}, v{TM+e}")
    def reads(s):
        o = []
        for c in range(4):
            o += [f"ds_read_b64_tr_b16 {vr(BF + 16*(s & 1) + 4*c, 2)}, v{28+c} offset:{s*4096}", f"ds_read_b64_tr_b16 {vr(BF + 16*(s & 1) + 4*c + 2, 2)}, v{28+c} offset:{s*4096 + 512}"]
        return o
    fill.pop(k, opt.get("k3_pre", 999))
    k.barrier()
    st.mark()
    for i in reads(0): k(i)
    for s in range(16):
        rd = []
        if s + 1 < 16:
            if (s + 1) % STG == 0: k.barrier()
            rd = reads(s + 1)
        for c in range(4):
            d = ACC + 4*c
            mfma(k, vr(d), vr(FB + 4*s), vr(BF + 16*(s & 1) + 4*c), s == 0)
            for i in rd[2*c:2*c+2]: k(i)
            fill.pop(k, 1)
    fill.flush(k)
    st.mark()
    for e in range(16): k(f"v_mul_f32 v{ACC+e}, v{ACC+e}, v{G+e}")
    for e in range(8): k(f"v_cvt_pk_bf16_f32 v{TM+e}, v{ACC+2*e}, v{ACC+2*e+1}")
    for c in range(4): k(f"ds_write_b64 v13, {vr(TM + 2*c, 2)} offset:{16*144*c}")
    for i in range(8): k(f"v_lshlrev_b32 v{G+2*i}, 16, v{XG+i}\nv_and_b32 v{G+2*i+1}, s66, v{XG+i}")
    k.wait_lg(); k.barrier()
    for e in range(2): k(f"ds_read_b128 {vr(TM + 4*e)}, v14 offset:{8*144*e}")
    U = TM + 8
    for i in range(8):
        u = U + 2*(i & 3)
        k(f"v_lshlrev_b32 v{u}, 16, v{TM+i}\nv_and_b32 v{u+1}, s66, v{TM+i}\nv_add_f32 v{u}, v{u}, v{G+2*i}\nv_add_f32 v{u+1}, v{u+1}, v{G+2*i+1}\nv_cvt_pk_bf16_f32 v{ACC+i}, v{u}, v{u+1}")
        if i % 4 == 3: k(f"buffer_store_dwordx4 {vr(ACC + 4*(i // 4))}, v12, s[40:43], s63 offen offset:{2048*(i // 4)}")
    st.mark()
    st.flush(0)
    k.label(f"END_{k.name}")
    k("s_endpgm")
    return k
```

```python
import numpy as np
def bf2f(a): return (a.astype(np.uint32) << 16).view(np.float32)
def f2bf(x):
    u = np.ascontiguousarray(x, dtype=np.float32).view(np.uint32).astype(np.uint64)
    return ((u + 0x7fff + ((u >> 16) & 1)) >> 16).astype(np.uint16)
def rb(x): return bf2f(f2bf(x))

WS_H = 0x0000000
WS_Y1 = 0x0800000
WS_WT = 0x0A00000
WS_Y2 = 0x0C00000
WS_W2P = 0x1000000
WS_P = 0x1400000
WS_G = 0x0E00000


def ftable():
    d = np.arange(512)[:, None]; k = np.arange(1, 257)[None, :]
    F = np.zeros((512, 512), np.float64)
    F[:, 0::2] = np.cos(2*np.pi*((d*k) % 512)/512); F[:, 1::2] = -np.sin(2*np.pi*((d*k) % 512)/512)
    F[np.abs(F) < 1e-9] = 0
    return rb(F)

def model(z):
    x = bf2f(z["A_x"]).reshape(2048, 512); wr = bf2f(z["A_w_r"]); wi = bf2f(z["A_w_i"])
    w1 = bf2f(z["B_w1"]); w2 = bf2f(z["B_w2"])
    m = x.mean(1, dtype=np.float64).astype(np.float32)
    var = ((x.astype(np.float64)**2).mean(1) - m.astype(np.float64)**2).astype(np.float32)
    sd = rb(np.sqrt(rb(rb(var) + np.float32(1e-5))))
    mb = rb(m)
    u = x @ w1 - mb[:, None]*w1.sum(0)[None, :]
    y = u / sd[:, None]
    h = rb(np.float32(-1.4426950408889634) * y / (1 + np.exp(-y)))
    F = ftable()
    sg = np.where(np.arange(512) // 2 % 2 == 0, -1.0, 1.0).astype(np.float32)
    Y1 = np.where(sg[None, :] > 0, rb(x[:, :256] + x[:, 256:]) @ F[:256], rb(x[:, :256] - x[:, 256:]) @ F[:256])
    Y1 = rb(Y1 / sd[:, None])
    out = {}
    mu = np.arange(16)[:, None, None, None, None, None]; S = np.arange(56)[None, :, None, None, None, None]
    T = np.arange(8)[None, None, :, None, None, None]; sl = np.arange(4)[None, None, None, :, None, None]
    j = np.arange(16)[None, None, None, None, :, None]; t = np.arange(8)[None, None, None, None, None, :]
    n = 64*(16*(T >> 2) + 4*(mu & 3) + (j & 3)) + 16*(mu >> 2) + 4*(T & 3) + (j >> 2)
    f = 32*S + 8*sl + t
    out["W2P"] = w2[f, 128*mu[:4] + 16*T + j]
    out["H"] = h[n, f]
    kp = np.arange(512)[:, None, None, None, None]; tb = np.arange(4)[None, :, None, None, None]
    g5 = np.arange(4)[None, None, :, None, None]; j5 = np.arange(16)[None, None, None, :, None]; t5 = np.arange(8)[None, None, None, None, :]
    nY = 64*(16*(t5 >> 2) + 4*g5 + (t5 & 3)) + 16*tb + j5
    out["Y1"] = np.ascontiguousarray(Y1[nY, kp].reshape(256, 2, 4, 4, 4, 4, 8).transpose(0, 2, 3, 4, 1, 5, 6))
    kap = np.arange(256)[:, None, None, None, None, None]; uu = np.arange(4)[None, :, None, None, None, None]
    tk = np.arange(2)[None, None, :, None, None, None]; g = np.arange(4)[None, None, None, :, None, None]
    j = np.arange(16)[None, None, None, None, :, None]; r = np.arange(4)[None, None, None, None, None, :]
    k1 = 16*tk + j + 64*(16*(uu & 1) + 4*g + r) + 32*(uu >> 1)
    col = kap + 1
    out["WT"] = np.concatenate([wr[k1, col], wi[k1, col]], axis=-1)
    Zc = Y1[:, 0::2] + 1j*Y1[:, 1::2]
    W = (wr + 1j*wi)[:, 1:257]
    Y2c = np.fft.ifft(np.fft.fft(Zc, axis=0)*W, axis=0) / 512 * np.where(np.arange(256) == 255, 1.0, 2.0)[None, :]
    Y2 = np.zeros((2048, 512), np.float32); Y2[:, 0::2] = Y2c.real; Y2[:, 1::2] = Y2c.imag
    Y2 = rb(Y2)
    y2 = Y2[nY, kp].reshape(256, 2, 4, 4, 16, 2, 4)
    out["Y2"] = np.ascontiguousarray(y2.transpose(0, 2, 3, 5, 4, 1, 6))
    P = np.stack([rb(h[:, 448*q:448*(q+1)] @ w2[448*q:448*(q+1)]) for q in range(4)])
    ix = np.indices((32, 8, 4, 2, 4, 16, 2, 4))
    rho, gam, C, e_, g_, j_, T_, r_ = ix
    Tt = 2*e_ + T_
    nn = 64*(16*(rho & 1) + 4*((rho >> 1) & 3) + (j_ & 3)) + 16*(rho >> 3) + 4*Tt + (j_ >> 2)
    out["P"] = P[:, nn, 64*gam + 16*C + 4*g_ + r_]
    o = P.sum(0) * np.float32(-0.6931471805599453)
    gg = rb(o / (1 + np.exp(-o)))
    out["G"] = gg
    s = rb(Y2 @ F.T)
    out["out"] = rb(x + rb(s*gg))
    return out

if __name__ == "__main__":
    z = np.load("ref0.npz")
    o = model(z)
    err = np.abs(o["out"].reshape(-1) - z["ref"])
    print("model vs ref: max", err.max(), "rms", np.sqrt((err**2).mean()))
```

```python
import numpy as np
from model import f2bf, bf2f
def ftab_asm():
    s = "; bf16 cos(2 pi i/512)\n"
    for i in range(512):
        c = np.cos(2*np.pi*i/512)
        if abs(c) < 1e-9: c = 0.0
        s += f".set CS{i}, {int(f2bf(np.array([c]))[0]):#x}\n"
    s += """.altmacro
.macro EMITCS i
.short CS\\i
.endm
.p2align 8
.type FB2,@object
FB2:
.set ff, 0
.rept 256
.set ll, 0
.rept 64
.set kk, 2*(8*(ff & 15) + ((ll & 15) >> 1)) + 2 - (ff >> 7)
.set ang, ((32*((ff >> 4) & 7) + 8*(ll >> 4))*kk + 128*(ll & 1)) & 511
.rept 8
EMITCS %ang
.set ang, (ang + kk) & 511
.endr
.set ll, ll + 1
.endr
.set ff, ff + 1
.endr
.size FB2, 262144
.noaltmacro
"""
    return s
def ctab():
    l = np.arange(64); g = (l >> 4)[:, None]; j = (l & 15)[:, None]; t = np.arange(8)[None, :]
    Sl = 16*(t >> 2) + 4*g + (t & 3)
    fr = []
    for kind in ("E", "O", "Op"):
        for fn in (np.cos, np.sin):
            for u in range(2):
                L = 16*u + j
                if kind == "E": ang = (L*Sl % 32)/32
                elif kind == "O": ang = (Sl*(2*L + 1) % 64)/64
                else: ang = (L*(2*Sl + 1) % 64)/64
                v = fn(2*np.pi*ang); v[np.abs(v) < 1e-9] = 0
                fr.append(f2bf(v/32))
    for i in range(4): fr.append(f2bf(bf2f(fr[i])*2))
    return np.stack(fr)
def ctab_asm():
    d = np.ascontiguousarray(ctab()).view(np.uint32).reshape(-1, 8)
    s = ".type CTAB,@object\nCTAB:\n"
    for row in d: s += ".long " + ",".join(f"{int(x):#x}" for x in row) + "\n"
    s += ".size CTAB, 16384\n"
    return s
```

```python
import re, copy
from asmlib import HEADER

TRANS = ("v_exp_f32", "v_log_f32", "v_rcp_f32", "v_rsq_f32", "v_sqrt_f32", "v_sin_f32", "v_cos_f32")
REG_RE = re.compile(r"^(-|\|)?(?:abs\()?([vas])(?:(\d+)|\[(\d+):(\d+)\])\)?\|?$")

def regs_of(tok):
    tok = tok.strip()
    if tok in ("vcc",): return [("s", 106), ("s", 107)]
    if tok == "vcc_lo": return [("s", 106)]
    if tok == "vcc_hi": return [("s", 107)]
    if tok == "exec_lo": return [("s", 126)]
    if tok == "exec_hi": return [("s", 127)]
    if tok == "exec": return [("s", 126), ("s", 127)]
    if tok == "m0": return [("s", 124)]
    m = REG_RE.match(tok)
    if not m: return []
    k = m.group(2)
    if m.group(3) is not None: return [(k, int(m.group(3)))]
    return [(k, i) for i in range(int(m.group(4)), int(m.group(5)) + 1)]

def split_ops(s):
    out, depth, cur = [], 0, ""
    for ch in s:
        if ch == "[": depth += 1
        if ch == "]": depth -= 1
        if ch == "," and depth == 0:
            out.append(cur.strip()); cur = ""
        else: cur += ch
    if cur.strip(): out.append(cur.strip())
    return out

class Ins:
    __slots__ = ("text", "mn", "cls", "dst", "src", "flags")

def parse(text):
    t = text.split(";")[0].strip()
    sp = t.split(None, 1)
    mn = sp[0]
    rest = sp[1] if len(sp) > 1 else ""
    ops = split_ops(rest)
    flags = []
    if ops:
        parts = ops[-1].split()
        ops[-1] = parts[0]
        flags = parts[1:]
    I = Ins(); I.text = text; I.mn = mn; I.flags = flags
    R = [regs_of(o) for o in ops]
    flat = lambda L: [r for x in L for r in x]
    I.dst, I.src = [], []
    if mn.startswith("v_mfma"):
        I.cls = "mfma"; I.dst = R[0]; I.src = R[1:]
    elif mn.startswith("buffer_load") or mn.startswith("global_load"):
        if "lds" in flags or mn.startswith("global_load_lds"):
            I.cls = "dma"; I.src = flat(R) + [("s", 124)]
        else:
            I.cls = "vload"; I.dst = R[0]; I.src = flat(R[1:])
            if "d16" in mn: I.src += R[0]
    elif mn.startswith("buffer_store") or mn.startswith("global_store") or mn.startswith("buffer_atomic") or mn.startswith("global_atomic"):
        I.cls = "vstore"; I.src = flat(R)
    elif mn.startswith("buffer_wbl2") or mn.startswith("buffer_inv"):
        I.cls = "vstore"
    elif mn.startswith("ds_read") or mn.startswith("ds_bpermute") or mn.startswith("ds_swizzle"):
        I.cls = "dsread"; I.dst = R[0]; I.src = flat(R[1:])
    elif mn.startswith("ds_write") or mn.startswith("ds_add"):
        I.cls = "dswrite"; I.src = flat(R)
    elif mn.startswith("s_load") or mn.startswith("s_memtime") or mn.startswith("s_memrealtime") or mn.startswith("s_buffer_load"):
        I.cls = "smem"; I.dst = R[0]; I.src = flat(R[1:])
    elif mn == "s_waitcnt": I.cls = "wait"
    elif mn == "s_nop": I.cls = "nop"
    elif mn == "s_barrier": I.cls = "barrier"
    elif mn.startswith("s_cbranch") or mn == "s_branch" or mn == "s_endpgm" or mn == "s_setprio" or mn == "s_sleep":
        I.cls = "ctl"
    elif mn.startswith("s_cmp"):
        I.cls = "salu"; I.src = flat(R)
    elif mn.startswith("s_"):
        I.cls = "salu"; I.dst = R[0]; I.src = flat(R[1:])
        if "saveexec" in mn: I.dst = I.dst + [("s", 126), ("s", 127)]
    elif mn.startswith("v_"):
        base = mn.replace("_e32", "").replace("_e64", "").replace("_dpp", "")
        I.cls = "trans" if base in TRANS else "valu"
        if base.startswith("v_permlane") and "swap" in base:
            I.cls = "perm"; I.dst = flat(R); I.src = flat(R)
        elif base.startswith("v_add_co") or base.startswith("v_addc_co") or base.startswith("v_sub_co"):
            I.dst = R[0] + R[1]; I.src = flat(R[2:])
        else:
            I.dst = R[0]; I.src = flat(R[1:])
            if base in ("v_fmac_f32", "v_dot2c_f32_bf16", "v_writelane_b32") : I.src += R[0]
            if base == "v_cndmask_b32" and len(ops) == 3: I.src += regs_of("vcc")
        if "dpp" in mn or any(f.startswith(("quad_perm", "row_", "wave_")) for f in flags): I.flags = flags + ["DPP"]
    else:
        raise ValueError("unknown instruction: " + text)
    return I

class State:
    def __init__(self):
        self.t = 0
        self.w = {}
        self.mfma_c = {}
        self.mfma_d = {}
        self.st = {}
        self.vm = []
        self.lg = []
        self.smem = []
        self.issued = set()
        self.dot = {}

class Prog:
    def __init__(self, name, grid, block, lds=0, vgpr=256, sgpr=100, agpr=0):
        self.name, self.grid, self.block, self.lds = name, grid, block, lds
        self.vgpr, self.sgpr, self.agpr = vgpr, sgpr, agpr
        self.lines = []
        self.S = State()
        self.nlab = 0
        self.maxv = -1; self.maxa = -1; self.maxs = -1
        self.stats = {"nop": 0, "ins": 0}
    def raw(self, s): self.lines.append(s)
    def label(self, l): self.lines.append(l + ":")
    def newlabel(self, b="L"):
        self.nlab += 1; return f"{b}{self.nlab}_{self.name}"
    def snapshot(self): return copy.deepcopy(self.S)
    def restore(self, s): self.S = copy.deepcopy(s)
    def _out(self, text, states=1):
        self.lines.append("    " + text); self.S.t += states; self.stats["ins"] += 1
        if getattr(self, "hop_every", 0):
            self.hop_cnt += 8 if re.match(r"(v_mfma|ds_|buffer_|global_|v_cvt_pk|v_pk_|v_fma_|v_lshl_|v_perm_b)", text) or "0x" in text else 4
            if self.hop_cnt >= self.hop_every and not text.startswith(("s_nop", "s_mov_b32 m0", "s_add_u32 m0")):
                self.hop_cnt = 0; self.hop_point()
    def hop_begin(self, every):
        self.hop_every, self.hop_cnt, self.hops = every, 0, []
    def hop_end(self): self.hop_every = 0
    def hop_point(self):
        i = len(self.hops); self.hops.append(i)
        self.lines.append(f"HP{i}_{self.name}:"); self.lines.append(f"    s_cbranch_execz HB{i}_{self.name}"); self.S.t += 1
    def nop(self, n):
        while n > 0:
            k = min(n, 16); self._out(f"s_nop {k-1}", k); n -= k; self.stats["nop"] += 1
    def wait_vm(self, tag=None, n=None):
        S = self.S
        if tag is not None:
            assert tag in S.issued, f"wait for a never issued op {tag}"
            idx = [i for i, (t, _) in enumerate(S.vm) if t == tag]
            if not idx: return
            n = len(S.vm) - 1 - idx[-1]
        elif n is None: n = 0
        if n >= len(S.vm): return
        assert n <= 63
        self._out(f"s_waitcnt vmcnt({n})")
        S.vm = S.vm[len(S.vm) - n:] if n else []
    def wait_lg(self, tag=None, n=None):
        S = self.S
        if S.smem:
            self._out("s_waitcnt lgkmcnt(0)"); S.lg = []; S.smem = []; return
        if tag is not None:
            idx = [i for i, (t, _) in enumerate(S.lg) if t == tag]
            if not idx: return
            n = len(S.lg) - 1 - idx[-1]
        elif n is None: n = 0
        if n >= len(S.lg): return
        n = min(n, 15)
        self._out(f"s_waitcnt lgkmcnt({n})")
        S.lg = S.lg[len(S.lg) - n:] if n else []
    def barrier(self):
        self._out("s_barrier")
    def __call__(self, s, tag=None):
        for ln in s.strip("\n").split("\n"):
            ln = ln.strip()
            if not ln or ln.startswith(";"): continue
            if ln.endswith(":"): self.label(ln[:-1]); continue
            self.ins(ln, tag)
    def ins(self, text, tag=None):
        I = parse(text); S = self.S
        src = [r for x in I.src for r in x] if I.cls == "mfma" else I.src
        touched = set(src) | set(I.dst)
        for (k, i) in touched:
            if k == "v": self.maxv = max(self.maxv, i)
            elif k == "a": self.maxa = max(self.maxa, i)
            elif i < 102: self.maxs = max(self.maxs, i)
        if I.cls == "wait": raise ValueError("use wait_vm/wait_lg")
        if I.cls == "nop": self._out(text, int(text.split()[1]) + 1); return
        need = None
        for i, (t, d) in enumerate(S.vm):
            if d and touched & d: need = i
        if need is not None: self.wait_vm(n=len(S.vm) - 1 - need)
        need = None
        for i, (t, d) in enumerate(S.lg):
            if d and touched & d: need = i
        if S.smem and touched & set(S.smem): self.wait_lg()
        elif need is not None: self.wait_lg(n=len(S.lg) - 1 - need)
        if I.cls in ("dsread", "dswrite") and len(S.lg) >= 15: self.wait_lg(n=14)
        req = 0
        def after(t, n):
            nonlocal req
            req = max(req, t + 1 + n)
        isvalu = I.cls in ("valu", "trans", "perm")
        ismem = I.cls in ("vload", "vstore", "dma", "dsread", "dswrite")
        if I.cls == "mfma":
            D = tuple(I.dst); C = tuple(I.src[2]) if len(I.src) > 2 else ()
            for idx, op in enumerate(I.src):
                for r in op:
                    if r in S.w and S.w[r][1] in ("valu", "trans"): after(S.w[r][0], 2)
                    if r in S.mfma_d:
                        t, d = S.mfma_d[r]
                        if idx == 2: after(t, 0 if d == C else 6)
                        else: after(t, 8)
            for r in D:
                if r in S.mfma_d and S.mfma_d[r][1] != C: after(S.mfma_d[r][0], 8)
            if ("s", 126) in S.w and S.w[("s", 126)][1] in ("valu",): after(S.w[("s", 126)][0], 4)
        else:
            for r in touched:
                if r in S.mfma_d and (isvalu or ismem): after(S.mfma_d[r][0], 8)
            if isvalu:
                for r in touched:
                    if r in S.dot and S.dot[r][1] != I.mn and S.w.get(r, (None,))[0] == S.dot[r][0]: after(S.dot[r][0], 3)
                for r in I.dst:
                    if r in S.mfma_c: after(S.mfma_c[r], 3)
                    if r in S.st: after(S.st[r], 2)
                for r in src:
                    if r in S.w:
                        t, k = S.w[r]
                        if k == "trans" and I.cls != "trans": after(t, 1)
                        if k in ("valu", "trans") and r[0] == "s": after(t, 2 if not I.mn.startswith(("v_readlane", "v_writelane")) else 4)
                        if k in ("valu", "trans") and r[0] != "s":
                            if I.cls == "perm" or "DPP" in I.flags: after(t, 2)
                            if I.mn.startswith(("v_readfirstlane", "v_readlane")): after(t, 1)
            if I.cls in ("vload", "dsread"):
                for r in I.dst:
                    if r in S.st: after(S.st[r], 1)
            if ismem:
                for r in src:
                    if r in S.w:
                        t, k = S.w[r]
                        if r[0] == "s" and k in ("valu", "trans") and I.cls in ("vload", "vstore", "dma"): after(t, 5)
                        if r == ("s", 124) and k == "salu" and I.cls == "dma": after(t, 1)
            if I.cls == "salu":
                for r in src:
                    if r in S.w and S.w[r][1] in ("valu", "trans"): after(S.w[r][0], 3)
        if req > S.t: self.nop(req - S.t)
        now = S.t
        self._out(text)
        if I.cls == "mfma":
            for r in I.dst:
                S.mfma_d[r] = (now, tuple(I.dst)); S.w.pop(r, None)
            if len(I.src) > 2:
                for r in I.src[2]: S.mfma_c[r] = now
        else:
            kind = {"valu": "valu", "perm": "valu", "trans": "trans", "salu": "salu"}.get(I.cls)
            for r in I.dst:
                S.mfma_d.pop(r, None)
                if kind: S.w[r] = (now, kind)
                else: S.w.pop(r, None)
        if I.mn.startswith("v_dot"):
            for r in I.dst: S.dot[r] = (now, I.mn)
        if I.cls == "vstore" and ("x3" in I.mn or "x4" in I.mn):
            for r in src:
                if r[0] != "s": S.st[r] = now
        if I.cls in ("vload", "vstore", "dma"):
            S.vm.append((tag, set(I.dst) if I.cls == "vload" else None))
            S.issued.add(tag)
            assert len(S.vm) <= 63, "more than 63 vmem ops possibly outstanding"
        if I.cls in ("dsread", "dswrite"):
            S.lg.append((tag, set(I.dst) if I.cls == "dsread" else None))
        if I.cls == "smem": S.smem += I.dst
    def text(self):
        return "\n".join([f".globl {self.name}", ".p2align 8", f".type {self.name},@function", f"{self.name}:"] + self.lines) + "\n"
    def desc(self):
        nv = self.maxv + 1
        acc = (nv + 3) // 4 * 4
        nfv = acc + self.maxa + 1 if self.maxa >= 0 else nv
        assert nv <= 256 and nfv <= 512, (nv, nfv)
        assert nfv <= self.vgpr, f"{self.name}: needs {nfv} regs > budget {self.vgpr}"
        return f""".p2align 6
.amdhsa_kernel {self.name}
  .amdhsa_next_free_vgpr {nfv}
  .amdhsa_next_free_sgpr {max(self.maxs + 1, 16)}
  .amdhsa_accum_offset {acc}
  .amdhsa_group_segment_fixed_size 0
  .amdhsa_kernarg_size 72
  .amdhsa_user_sgpr_count 2
  .amdhsa_user_sgpr_kernarg_segment_ptr 1
  .amdhsa_system_sgpr_workgroup_id_x 1
.end_amdhsa_kernel
"""

DOC = """;
;
; Rows are handled in the permuted order n = 64 a + b that makes the column FFT's first operand contiguous.
"""
def build(launches, rodata=""):
    s = HEADER
    for k in launches:
        s += f"; @launch kernel={k.name} grid=({k.grid},1,1) block=({k.block},1,1) lds={k.lds}\n"
    s += DOC
    s += '.amdgcn_target "amdgcn-amd-amdhsa--gfx950"\n.text\n'
    seen = []
    for k in launches:
        if k not in seen: seen.append(k)
    for k in seen: s += k.text()
    s += 'CODE_END:\n'
    s += '.section .rodata,"a"\n'
    for k in seen: s += k.desc()
    s += rodata
    return s
```

```python
import struct, re
from emit import *
from model import WS_H, WS_Y1, WS_WT, WS_Y2, WS_G, WS_W2P
def f2u(x): return struct.unpack("<I", struct.pack("<f", x))[0]
def fx(x): return hex(f2u(x))
LOG2E = 1.4426950408889634

def prologue(k, nblk):
    k(f"""
    s_cmp_ge_u32 s2, {nblk}
    s_cbranch_scc1 END_{k.name}
    s_load_dwordx16 s[4:19], s[0:1], 0
    s_load_dwordx2 s[20:21], s[0:1], 64
    """)
def srd(k, d, lo, hi, size, add=None):
    if add is None:
        k(f"s_mov_b32 s{d}, s{lo}\ns_mov_b32 s{d+1}, s{hi}")
    else:
        k(f"s_add_u32 s{d}, s{lo}, {add}\ns_addc_u32 s{d+1}, s{hi}, 0")
    k(f"s_mov_b32 s{d+2}, {size}\ns_mov_b32 s{d+3}, 0x20000")
def srd_table(k, d, sym, size):
    k(f"s_getpc_b64 s[{d}:{d+1}]")
    k(f"s_add_u32 s{d}, s{d}, {sym}@rel32@lo+4")
    k(f"s_addc_u32 s{d+1}, s{d+1}, {sym}@rel32@hi+12")
    k(f"s_mov_b32 s{d+2}, {size}\ns_mov_b32 s{d+3}, 0x20000")

STAMP = 0x8000000
class Stamps:
    def __init__(self, k, on, slot, vbase): self.k, self.on, self.slot, self.n, self.vb = k, on, slot, 0, vbase
    def reset(self, n): self.n = n
    def mark(self, name=None):
        if not self.on: return
        if name is not None and (not isinstance(self.on, list) or name not in self.on): return
        if name is None and isinstance(self.on, list) and "front" in self.on and self.n > 0 and not getattr(self, "fl", 0): return
        k = self.k
        k("s_memrealtime s[100:101]" if False else "s_memrealtime s[22:23]")
        if getattr(k, 'clk', 0): k("s_memtime s[100:101]" if False else "s_memtime s[90:91]" if False else "s_memtime s[0:1]")
        k.wait_lg()
        if getattr(k, "allw", 0): k(f"s_mov_b32 s{4 + self.n}, s22")
        else: k(f"v_mov_b32 v{self.vb + self.n}, s22")
        if getattr(k, 'clk', 0): k(f"v_mov_b32 v255, s0\nv_accvgpr_write_b32 a{200 + self.n}, v255")
        self.n += 1
    def flush(self, who):
        if not self.on: return
        k = self.k
        k._out('s_waitcnt vmcnt(0)'); k.S.vm = []
        self.fl = 1; self.mark(); self.fl = 0
        L = k.newlabel("NOST")
        if getattr(k, "allw", 0):
            self.vb = 20
            for i in range(self.n): k(f"v_mov_b32 v{20+i}, s{4+i}")
        if getattr(k, "allw", 0):
            k(f"s_lshl_b32 s22, s2, 3\ns_add_u32 s22, s22, s3\ns_lshl_b32 s22, s22, 6\ns_add_u32 s22, s22, {STAMP + 65536}\nv_mov_b32 v1, s22")
            for i in range(self.n): k(f"global_store_dword v1, v{self.vb+i}, s[20:21] offset:{4*i}")
        k(f"s_cmp_lg_u32 s3, {who}\ns_cbranch_scc1 {L}")
        k(f"s_lshl_b32 s22, s2, 6\ns_add_u32 s22, s22, {STAMP + self.slot*16384}\nv_mov_b32 v1, s22")
        for i in range(self.n): k(f"global_store_dword v1, v{self.vb+i}, s[20:21] offset:{4*i}")
        if getattr(k, 'clk', 0):
            for i in range(self.n): k(f"global_store_dword v1, a{200+i}, s[20:21] offset:{32+4*i}")
        k.label(L)

def vr(a, n=4): return f"v[{a}:{a+n-1}]"
def ar(a, n=4): return f"a[{a}:{a+n-1}]"

class Merge:
    def __init__(self): self.q = []
    def add(self, *ins): self.q += list(ins)
    def pop(self, k, n):
        for _ in range(n):
            if not self.q: return
            it = self.q.pop(0)
            if callable(it): it()
            else: k(it)
    def flush(self, k): self.pop(k, len(self.q))


K1_LDS = 163840
FAR = "0x40000000"

def mfma(k, d, a, b, first=False):
    k(f"v_mfma_f32_16x16x32_bf16 {d}, {a}, {b}, {'0' if first else d}")

def spin_until(k, need, addr_v, lab, tmp_v=None, width=1, off=0, sleep=0):
    L, L2 = k.newlabel(lab), k.newlabel(lab)
    if sleep:
        k(f"s_branch {L2}"); k.label(L); k(f"s_sleep {sleep}"); k.label(L2)
    else: k.label(L)
    if width == 1: k(f"ds_read_b32 v{tmp_v}, v{addr_v} offset:{off}")
    elif width == 2: k(f"ds_read_b64 {vr(tmp_v, 2)}, v{addr_v} offset:{off}\nv_min_u32 v{tmp_v}, v{tmp_v}, v{tmp_v+1}")
    else: k(f"ds_read_b128 {vr(tmp_v)}, v{addr_v} offset:{off}\nv_min_u32 v{tmp_v}, v{tmp_v}, v{tmp_v+1}\nv_min3_u32 v{tmp_v}, v{tmp_v}, v{tmp_v+2}, v{tmp_v+3}")
    k(f"v_readfirstlane_b32 s52, v{tmp_v}\ns_cmp_lt_u32 s52, {need}\ns_cbranch_scc1 {L}")
def slow_paths(k, slow, fv, av):
    for Ls, Lb in slow:
        k.label(Ls)
        for i in ("s_sleep 1", f"ds_read_b64 v[{fv}:{fv+1}], v{av}", "s_waitcnt lgkmcnt(0)", f"v_min_u32 v{fv}, v{fv}, v{fv+1}", "s_nop 0", f"v_readfirstlane_b32 s52, v{fv}",
                  "s_nop 3", "s_cmp_lt_u32 s52, s79", f"s_cbranch_scc1 {Ls}", f"s_branch {Lb}"): k._out(i)

def build_k1(opt):
    k = Prog("k1_kernel", 256, 512, lds=K1_LDS, vgpr=256)
    k.stamps = Stamps(k, opt.get("stamps"), 0, 248)
    k.allw = 1
    k(f"""
    s_cmpk_ge_u32 s2, 256
    s_cbranch_scc1 END_{k.name}
    s_load_dwordx2 s[24:25], s[0:1], 0
    s_load_dwordx2 s[28:29], s[0:1], 32
    s_load_dwordx2 s[36:37], s[0:1], 64
    s_load_dwordx2 s[44:45], s[0:1], 8
    s_load_dwordx2 s[48:49], s[0:1], 16
    s_load_dwordx2 s[40:41], s[0:1], 40
    """)
    if opt.get("stamps"): k("s_load_dwordx2 s[20:21], s[0:1], 64")
    k(f"""
    v_lshrrev_b32 v4, 6, v0
    v_and_b32 v1, 63, v0
    v_readfirstlane_b32 s3, v4
    v_lshrrev_b32 v2, 4, v1
    v_and_b32 v3, 15, v0
    v_and_b32 v21, 3, v0
    v_lshlrev_b32 v46, 4, v1
    s_lshr_b32 s59, s2, 6
    s_bfe_u32 s58, s2, 0x20001
    s_lshl2_add_u32 s58, s58, s59
    s_bfe_u32 s60, s2, 0x30003
    s_and_b32 s56, s2, 1
    s_mov_b32 s38, 0x1200000
    s_mov_b32 s39, 0x20000
    s_and_b32 s55, s3, 3
    """)
    k.stamps.mark()
    k(f"s_cmp_lt_u32 s3, 4\ns_cbranch_scc1 K1_MMA")
    snap = k.snapshot()
    k("s_cmp_ge_u32 s3, 6\ns_cbranch_scc1 K1_STAT")
    loader(k, opt)
    k("s_endpgm")
    k.label("K1_STAT"); k.restore(snap)
    stat_worker(k, opt)
    k("s_endpgm")
    k.label("K1_MMA"); k.restore(snap)
    k("s_cmp_eq_u32 s60, 7\ns_cbranch_scc1 K1_FM")
    snap2 = k.snapshot()
    mma_h(k, opt)
    k("s_endpgm")
    k.label("K1_FM"); k.restore(snap2)
    mma_f(k, opt)
    k.label(f"END_{k.name}")
    k("s_endpgm")
    return k

SC = 131072
SC_PART = SC + 16384

def loader(k, opt):
    k.stamps.reset(1)
    k(f"""
    s_setprio {opt.get("k1_lprio", 0)}
    s_and_b32 s54, s3, 1
    v_and_b32 v22, 7, v0
    v_and_b32 v23, 24, v0
    v_lshlrev_b32 v20, 13, v23
    v_and_b32 v23, 32, v0
    v_lshl_or_b32 v20, v23, 5, v20
    v_xor_b32 v23, v22, v2
    v_lshl_or_b32 v4, v23, 4, v20
    v_xor_b32 v5, 64, v4
    v_add_u32 v5, 0x400, v5
    v_add_u32 v6, 0xff800, v4
    v_add_u32 v7, 0xff800, v5
    s_lshl_b32 s81, s58, 12
    s_lshl_b32 s63, s54, 19
    s_add_u32 s81, s81, s63
    s_mov_b32 s26, 0x200000
    s_mov_b32 s27, 0x20000
    s_mov_b32 s31, 0x20000
    s_lshl_b32 s73, s54, 13
    s_movk_i32 s57, 0x3ff
    s_cmp_eq_u32 s60, 7
    s_cbranch_scc1 K1_LF
    """)
    snap = k.snapshot()
    for ty in "HF":
        H = ty == "H"
        if H:
            k(f"""
            v_lshrrev_b32 v27, 3, v1
            v_mul_u32_u24 v40, 0xe00, v27
            v_lshrrev_b32 v26, 3, v0
            v_and_b32 v26, 2, v26
            v_xor_b32 v26, v22, v26
            v_lshl_add_u32 v40, v26, 4, v40
            v_add_u32 v41, {32*3584 - 1024}, v40
            v_xor_b32 v42, 64, v40
            v_add_u32 v42, {8*3584 - 2048}, v42
            v_add_u32 v43, {32*3584 - 1024}, v42
            s_add_u32 s76, s59, s60
            s_and_b32 s76, s76, {0 if opt.get("k1_norot") else opt.get("k1_rotmask", 1)}
            s_lshl_b32 s76, s76, {opt.get("k1_rotshift", 8)}
            s_mul_i32 s70, s56, 7
            s_add_u32 s70, s60, s70
            s_lshl1_add_u32 s70, s70, s54
            s_lshl_b32 s70, s70, 7
            s_mov_b32 s30, 1835008
            """)
            k.wait_lg()
        else:
            k.label("K1_LF"); k.restore(snap)
            k(f"s_lshl_b32 s70, s56, 17\ns_add_u32 s70, s70, s73")
            k.wait_lg()
            k(f"s_getpc_b64 s[28:29]\ns_add_u32 s28, s28, FB2@rel32@lo+4\ns_addc_u32 s29, s29, FB2@rel32@hi+12\ns_mov_b32 s30, 0x40000")
        def stage_x(q):
            if H: k(f"s_add_u32 s83, s76, s81\ns_add_u32 m0, s73, {(q % 4)*32768}\ns_addk_i32 s76, 128")
            else: k(f"s_add_u32 s83, s76, s81\ns_add_u32 m0, s73, {(q % 4)*32768}" + ("\ns_addk_i32 s83, 0x200\ns_addk_i32 s76, 128" if q & 1 else ""))
            for r in range(2):
                if r: k(f"s_add_u32 m0, s73, {(q % 4)*32768 + 0x1000}\ns_add_u32 s83, s83, 0x40000")
                for i in range(4): k(f"buffer_load_dwordx4 v{4+i}, s[24:27], s83 offen offset:{1024*i} lds", tag=("x", q))
            k("s_and_b32 s76, s76, s57")
        def stage_w(q):
            k(f"s_mul_i32 s79, s77, {1792 if H else 128}\ns_add_u32 m0, s73, {(q % 4)*32768 + 0x4000}\ns_add_u32 s79, s79, s70\ns_addk_i32 s77, 128")
            for r in range(2):
                if r: k(f"s_add_u32 m0, s73, {(q % 4)*32768 + 0x5000}\ns_add_u32 s79, s79, {16*3584 if H else 4096}")
                for i in range(4): k(f"buffer_load_dwordx4 v{[40, 41, 42, 43][i] if H else 46}, s[28:31], s79 offen offset:{1024*i} lds", tag=("w", q))
            k("s_and_b32 s77, s77, s72")
        def stage(q): stage_x(q); stage_w(q)
        def bar(tag): k.wait_vm(tag=tag); k.barrier()
        J = 52
        if H:
            k("s_mov_b32 s77, s76\ns_movk_i32 s72, 0x3ff")
            stage(0); stage(1)
            k("s_mul_i32 s71, s59, 7\ns_add_u32 s71, s71, s60\ns_and_b32 s63, s2, 7\ns_lshl3_add_u32 s71, s71, s63\ns_mov_b32 s75, s2")
            bar(("w", 0)); stage(2)
            bar(("w", 1)); stage(3); stage(4)
            bar(("w", 2)); stage(5)
            jobs_setup(k, True)
            bar(("w", 3)); stage(6)
            bar(("w", 4)); stage(7)
            jobs_loads(k, J, True)
            prefetch_next(k, opt)
            for q in (5, 6, 7): bar(("w", q))
            if opt.get("k1_jsplit", 0): jobs_finish(k, opt, J, True, lambda: k.barrier())
            else:
                k.barrier(); k.barrier(); jobs_finish(k, opt, J, True, None)
            k.stamps.n = 1; k.stamps.flush(9)
            k("s_endpgm")
        else:
            k(f"s_and_b32 s76, s59, {opt.get('k1_frot', 3)}\ns_lshl_b32 s77, s76, 8\ns_lshl_b32 s76, s76, 7\ns_movk_i32 s72, 0x3ff\ns_movk_i32 s57, 0x1ff")
            stage_x(0); stage_x(1); stage_w(0); stage_w(1)
            bar(("x", 1)); stage(2)
            bar(("w", 1)); stage(3)
            for q in range(2, 8):
                bar(("w", q))
                if q + 2 < 8: stage(q + 2)
            prefetch_next(k, opt)
            k.stamps.n = 1; k.stamps.flush(9)

def prefetch_next(k, opt):
    if not opt.get("pf_code", 1): return
    k("s_getpc_b64 s[22:23]")
    lab = k.newlabel("PC"); k.label(lab)
    k(f"s_and_b32 s63, s2, 0xf8\nv_min_u32 v26, 7, v1\nv_add_lshl_u32 v26, v26, s63, 7\ns_add_u32 s22, s22, k2_kernel-{lab}\ns_addc_u32 s23, s23, 0")
    k(f"v_min_u32 v26, CODE_END-k2_kernel-4, v26\nglobal_load_dword v8, v26, s[22:23]")
    k("s_getpc_b64 s[22:23]\ns_add_u32 s22, s22, CTAB@rel32@lo+4\ns_addc_u32 s23, s23, CTAB@rel32@hi+12\ns_lshr_b32 s63, s63, 1\nv_add_lshl_u32 v26, v21, s63, 7\nglobal_load_dword v9, v26, s[22:23]")

def stat_worker(k, opt):
    k.stamps.reset(1)
    TM = 104
    k(f"s_and_b32 s54, s3, 1\ns_lshl_b32 s63, s54, 6\nv_add_u32 v25, s63, v1\nv_lshlrev_b32 v26, 3, v25\nv_add_u32 v26, {SC}, v26\nv_lshlrev_b32 v27, 2, v25\nv_add_u32 v27, {SC + 1024}, v27")
    if opt.get("pf_code", 1):
        k("s_getpc_b64 s[22:23]")
        lab = k.newlabel("PC"); k.label(lab)
        k(f"s_and_b32 s63, s2, 0xf8\nv_min_u32 v8, 7, v1\nv_add_lshl_u32 v8, v8, s63, 6\nv_and_b32 v8, 0xffffff80, v8\ns_add_u32 s22, s22, k1_kernel-{lab}\ns_addc_u32 s23, s23, -1")
        k(f"v_lshl_add_u32 v8, s54, 14, v8\nv_min_u32 v8, CODE_END-k1_kernel-4, v8\nglobal_load_dword v9, v8, s[22:23]")
        k.S.vm = []
    k(f"v_mov_b32 v{TM}, 0\nv_mov_b32 v{TM+1}, 0\nds_write_b64 v26, {vr(TM, 2)} offset:{SC_PART - SC + 1024}")
    if opt.get("pf_fb", 1):
        k("s_getpc_b64 s[22:23]\ns_add_u32 s22, s22, FB2@rel32@lo+4\ns_addc_u32 s23, s23, FB2@rel32@hi+12")
        k(f"s_lshr_b32 s63, s2, 3\ns_lshl1_add_u32 s63, s63, s54\ns_lshl_b32 s63, s63, 11\ns_lshl_b32 s64, s56, 17\ns_add_u32 s63, s63, s64\nv_lshl_add_u32 v8, v3, 7, s63\nglobal_load_dword v10, v8, s[22:23]")
        k.S.vm = []
    LJ, LE = k.newlabel("FJ"), k.newlabel("FE")
    k("v_mov_b32 v36, 0")
    k.wait_lg()
    k(f"s_cmp_eq_u32 s60, 0\ns_cbranch_scc1 {LJ}")
    snap = k.snapshot()
    for i in range(9): k.barrier()
    k(f"s_branch {LE}")
    k.label(LJ); k.restore(snap)
    k("v_mov_b32 v44, v26\nv_mov_b32 v45, v27\nv_and_b32 v22, 7, v0\ns_add_u32 s75, s2, 56\ns_add_u32 s54, s54, 2")
    for i in range(3): k.barrier()
    jobs_setup(k, False)
    for i in range(2): k.barrier()
    jobs_loads(k, 52, False)
    k.S.vm = []
    k("v_mov_b32 v47, v27\nv_mov_b32 v26, v44\nv_mov_b32 v27, v45")
    for i in range(4): k.barrier()
    k.label(LE)
    for nc in range(2): k(f"ds_read_b64 {vr(TM + 2*nc, 2)}, v26 offset:{SC_PART - SC + 1024*nc}")
    for e in range(2): k(f"v_add_f32 v{TM+e}, v{TM+e}, v{TM+2+e}")
    stats_math(k, [(TM, TM+1)], lambda i: (TM + 2, TM + 4))
    k(f"v_mul_f32 v{TM+3}, {fx(-LOG2E)}, v{TM+4}\nds_write_b32 v27, v{TM+4}\nds_write_b64 v26, {vr(TM+2, 2)}")
    k.wait_lg(); k.barrier()
    k(f"s_cmp_lg_u32 s60, 0\ns_cbranch_scc1 END_k1_kernel\nv_mov_b32 v27, v47")
    k._out("s_waitcnt vmcnt(0)")
    jobs_finish(k, opt, 52, False, None)

def stats_publish(SUM, GRAM, T, nt):
    o = []
    for t in range(nt): o += [f"v_cndmask_b32 v{T+2*t+1}, v{GRAM+4*t}, v{GRAM+4*t+1}, s[94:95]", f"v_mov_b32 v{T+2*t}, v{SUM+4*t}"]
    for t in range(nt): o += [f"v_cndmask_b32 v{T+2*t+1}, v{T+2*t+1}, v{GRAM+4*t+2}, s[96:97]"]
    for t in range(nt): o += [f"v_cndmask_b32 v{T+2*t+1}, v{T+2*t+1}, v{GRAM+4*t+3}, s[98:99]"]
    o += [f"ds_write_b64 v13, {vr(T+2*t, 2)} offset:{128*t}" for t in range(nt)]
    return o
def stats_setup(k, ONES):
    k(f"v_cmp_eq_u32 s[94:95], 1, v21\nv_cmp_eq_u32 s[96:97], 2, v21\nv_cmp_eq_u32 s[98:99], 3, v21")
    k(f"s_mov_b32 vcc_lo, 0x00f0000f\ns_mov_b32 vcc_hi, 0xf0000f00\ns_add_u32 s63, s63, {SC_PART}\nv_lshl_add_u32 v13, v3, 3, s63")
    k(f"v_lshlrev_b32 v27, 3, v1\nv_add_u32 v27, {SC_PART + 2048}, v27\nv_cndmask_b32 v13, v27, v13, vcc")
    k(f"v_mov_b32 v{ONES}, 0x3f803f80")
    for i in range(1, 4): k(f"v_mov_b32 v{ONES+i}, v{ONES}")

def jobs_setup(k, w2):
    k(f"""
    s_and_b32 s62, s54, 1
    s_lshl1_add_u32 s63, s75, s62
    s_and_b32 s69, s63, 7
    s_lshr_b32 s63, s63, 3
    s_lshl_b32 s63, s63, 1
    s_and_b32 s64, s63, 3
    s_and_b32 s65, s63, 12
    s_lshl4_add_u32 s64, s65, s64
    s_and_b32 s65, s63, 32
    s_lshl3_add_u32 s64, s65, s64
    s_lshr_b32 s65, s63, 6
    s_lshl3_add_u32 s64, s65, s64
    s_and_b32 s65, s63, 16
    s_lshl2_add_u32 s64, s64, s65
    s_mulk_i32 s64, 257
    s_lshl4_add_u32 s64, s69, s64
    s_lshl4_add_u32 s64, s69, s64
    s_lshl_b32 s64, s64, 1
    s_add_u32 s64, s64, 2
    s_lshl_b32 s69, s69, 12
    s_add_u32 s69, s69, s63
    s_lshl_b32 s69, s69, 6
    s_add_u32 s84, s69, {WS_WT}
    s_mov_b32 s46, 1052672
    s_mov_b32 s47, 0x20000
    s_mov_b32 s50, 1052672
    s_mov_b32 s51, 0x20000
    s_mul_i32 s53, s54, 0x1800
    s_add_u32 s53, s53, {SC + 2048}
    s_cmp_ge_u32 s54, 2
    s_cselect_b32 s63, {20480 - 2048 - 2*0x1800}, 0
    s_add_u32 s53, s53, s63
    v_bfe_u32 v24, v0, 2, 2
    v_lshl_add_u32 v32, v24, 6, v2
    v_mul_u32_u24 v32, 514, v32
    v_lshl_add_u32 v32, v21, 4, v32
    v_lshrrev_b32 v12, 2, v1
    v_add_u32 v39, s53, v46
    v_lshlrev_b32 v37, 6, v12
    v_lshl_add_u32 v37, v21, 3, v37
    v_add_u32 v37, s53, v37
    v_lshlrev_b32 v27, 4, v2
    v_lshl_add_u32 v27, v3, 7, v27
    v_add_u32 v27, s53, v27
    v_lshrrev_b32 v36, 3, v1
    v_lshlrev_b32 v36, 13, v36
    v_lshl_add_u32 v36, v22, 4, v36
    """)
    if not w2: return
    k(f"""
    s_lshr_b32 s65, s71, 2
    s_and_b32 s66, s71, 3
    s_lshl1_add_u32 s67, s66, s62
    s_lshl_b32 s67, s67, 7
    s_lshl_b32 s63, s65, 15
    s_add_u32 s67, s67, s63
    s_mul_i32 s66, s66, 56
    s_add_u32 s66, s66, s65
    s_lshl1_add_u32 s66, s66, s62
    s_lshl_b32 s66, s66, 12
    s_add_u32 s86, s66, {WS_W2P}
    s_add_u32 s65, s67, 0x4000
    s_mov_b32 s42, 1835008
    s_mov_b32 s43, 0x20000
    v_lshlrev_b32 v33, 10, v12
    v_lshl_add_u32 v33, v21, 4, v33
    v_lshl_add_u32 v38, v2, 8, v37
    """)
def jobs_loads(k, J, w2):
    for u in range(2):
        j = J + 16*u
        k(f"buffer_load_dwordx4 {vr(j)}, v32, s[44:47], s64 offen offset:{4*514*u}\nbuffer_load_dwordx4 {vr(j + 4)}, v32, s[48:51], s64 offen offset:{4*514*u}")
        if w2: k(f"buffer_load_dwordx4 {vr(j + 8)}, v33, s[40:43], s67 offen offset:{64*u}\nbuffer_load_dwordx4 {vr(j + 12)}, v33, s[40:43], s65 offen offset:{64*u}")
def jobs_finish(k, opt, J, w2, bar):
    SW = opt.get("k1_storew", "sc1")
    for u in range(2):
        j = J + 16*u
        for pl in range(2): k(f"ds_write_b128 v39, {vr(j + 4*pl)} offset:{1024*pl}")
        for ch in range(2):
            k(f"ds_read_b64_tr_b16 {vr(j + 4*ch, 2)}, v37 offset:{32*ch}\nds_read_b64_tr_b16 {vr(j + 2 + 4*ch, 2)}, v37 offset:{32*ch + 1024}")
        if w2:
            for pl in range(2): k(f"ds_write_b128 v39, {vr(j + 8 + 4*pl)} offset:{1024*pl}")
            for ch in range(2):
                k(f"ds_read_b64_tr_b16 {vr(j + 8 + 4*ch, 2)}, v38 offset:{32*ch}\nds_read_b64_tr_b16 {vr(j + 10 + 4*ch, 2)}, v38 offset:{32*ch + 256}")
        for ch in range(2): k(f"ds_write_b128 v27, {vr(j + 4*ch)} offset:{2048 + 2048*ch + 64*u}")
        if w2:
            for e in range(2): k(f"buffer_store_dwordx4 {vr(j + 8 + 4*e)}, v46, s[36:39], s86 offen offset:{2048*u + 1024*e} {SW}")
        if bar: bar()
    for e in range(4): k(f"ds_read_b128 {vr(J + 32 + 4*e)}, v39 offset:{2048 + 1024*e}")
    for e in range(4):
        k(f"buffer_store_dwordx4 {vr(J + 32 + 4*e)}, v36, s[36:39], s84 offen {SW}")
        if e < 3: k("s_add_u32 s84, s84, 0x10000")

def stats_math(k, regs, outs):
    k(f"s_mov_b32 s92, {fx(1/512)}\ns_mov_b32 s93, 0xffff0000\ns_mov_b32 s91, {fx(1e-5)}")
    seq = ["v_mul_f32 v{S}, s92, v{S}", "v_mul_f32 v{G}, s92, v{G}", "v_fma_f32 v{G}, -v{S}, v{S}, v{G}", "v_max_f32 v{G}, 0, v{G}",
           "v_cvt_pk_bf16_f32 v{G}, v{G}, -v{S}", "NM", "v_lshlrev_b32 v{G}, 16, v{G}", "v_add_f32 v{G}, s91, v{G}",
           "v_cvt_pk_bf16_f32 v{G}, v{G}, v{G}", "v_lshlrev_b32 v{G}, 16, v{G}", "v_sqrt_f32 v{G}, v{G}",
           "v_cvt_pk_bf16_f32 v{G}, v{G}, v{G}", "v_lshlrev_b32 v{G}, 16, v{G}", "v_rcp_f32 v{R}, v{G}"]
    for ins in seq:
        for i, (S, G) in enumerate(regs):
            nm, rr = outs(i)
            if ins == "NM":
                if nm is not None: k(f"v_and_b32 v{nm}, s93, v{G}")
            else: k(ins.format(S=S, G=G, R=rr))

def xread_addr(k):
    k("""
    s_and_b32 s54, s3, 1
    s_lshr_b32 s55, s3, 1
    s_lshl_b32 s74, s54, 13
    v_lshrrev_b32 v23, 1, v3
    v_xor_b32 v23, v23, v2
    v_lshl_add_u32 v20, v3, 7, s74
    v_lshl_add_u32 v44, v23, 4, v20
    v_xor_b32 v45, 64, v44
    """)

def mma_h(k, opt):
    ST = opt.get("k1_store", "sc1")
    k.stamps.reset(1)
    XF, BF, ACC, CSA, SUM, GRAM, ONES, REC, T = 52, 84, 116, 180, 188, 204, 220, 224, 232
    CS = 52
    xread_addr(k)
    k(f"""
    v_bfe_u32 v24, v0, 2, 2
    v_lshlrev_b32 v23, 11, v2
    v_lshl_add_u32 v23, v24, 7, v23
    v_lshl_add_u32 v23, v21, 3, v23
    s_mul_i32 s63, s55, 0x2400
    s_addk_i32 s63, 0x4000
    v_add_u32 v23, s63, v23
    s_lshl_b32 s63, s55, 6
    v_xor_b32 v44, s63, v44
    v_xor_b32 v45, s63, v45
    s_movk_i32 s79, 0x400
    v_bfe_u32 v26, v0, 3, 2
    s_lshl_b32 s62, s54, 1
    v_xor_b32 v26, s62, v26
    """)
    for c in range(4): k(f"v_xor_b32 v27, {c}, v26\nv_lshl_add_u32 v{4+c}, v27, 5, v23\nv_xor_b32 v{8+c}, s79, v{4+c}")
    for i in range(ACC, GRAM + 16, 2): k(f"v_pk_mov_b32 {vr(i, 2)}, 0, 0")
    def late_setup():
        k(f"s_lshl_b32 s61, s55, 8\ns_add_u32 s61, s61, {SC + 1536}\nv_lshl_add_u32 v28, v2, 4, s61")
        for c in range(4):
            k(f"s_xor_b32 s78, s62, {c}\ns_mul_i32 s77, s78, 0x1200\ns_and_b32 s{84+c}, s77, 0x2200\ns_add_u32 s{88+c}, s{84+c}, {56*8192}")
            if c % 2 == 0: k(f"v_lshl_add_u32 v{48+c//2}, s78, 6, v28")
        k("s_lshl1_add_u32 s63, s55, s54\ns_lshl_b32 s63, s63, 9")
        stats_setup(k, ONES)
        k(f"""
        v_and_b32 v18, 16, v0
        v_lshlrev_b32 v18, 8, v18
        v_and_b32 v26, 32, v0
        v_lshl_or_b32 v18, v26, 3, v18
        v_lshl_or_b32 v18, v3, 4, v18
        s_mul_i32 s70, s56, 7
        s_add_u32 s60, s60, s70
        s_and_b32 s63, s58, 12
        s_add_u32 s63, s63, s62
        s_mul_i32 s63, s63, 28
        s_lshl1_add_u32 s63, s60, s63
        s_add_u32 s63, s63, s55
        s_and_b32 s62, s58, 3
        s_lshl4_add_u32 s63, s63, s62
        s_lshl_b32 s63, s63, 10
        v_add_u32 v18, s63, v18
        s_lshl_b32 s63, s54, 9
        s_add_u32 s63, s63, {SC}
        v_lshl_add_u32 v17, v3, 3, s63
        s_mov_b32 s77, 0x10000
        s_mov_b32 s78, 0
        """)
    if not opt.get("k1_late", 1): late_setup()
    def rd(h, odd):
        o = [f"ds_read_b128 {vr(XF + 16*h + 4*t)}, v{44+h} offset:{2048*t + 32768*odd}" for t in range(4)]
        for c in range(4):
            d = BF + 16*h + 4*c
            o += [f"ds_read_b64_tr_b16 {vr(d, 2)}, v{4+4*h+c} offset:{32768*odd}", f"ds_read_b64_tr_b16 {vr(d+2, 2)}, v{4+4*h+c} offset:{512 + 32768*odd}"]
        if opt.get("x_noread"): return []
        return [o[0], o[4], o[5], o[1], o[2], o[3]] + o[6:]
    def mm(h, fill):
        seq = [(ACC + 16*c + 4*t, BF + 16*h + 4*c, XF + 16*h + 4*t) for c in range(4) for t in range(4)]
        seq += [(CSA + 4*c, BF + 16*h + 4*c, ONES) for c in range(2)]
        if h == 0:
            st = []
            for t in range(4): st += [(SUM + 4*t, ONES, XF + 4*t), (GRAM + 4*t, XF + 4*t, XF + 4*t)]
            seq = seq[:4] + st + seq[4:]
        for n, (d, a, b) in enumerate(seq):
            if not opt.get("x_nomfma"): mfma(k, vr(d), vr(a), vr(b))
            fill.pop(k, (opt.get('k1_rp', 1) if n < 17 else 2))
        fill.flush(k)
    k.stamps.mark()
    k.wait_lg()
    k.barrier()
    if opt.get("stamps") == 3:
        k._out("s_memtime s[14:15]"); k._out("s_memrealtime s[16:17]"); k._out("s_waitcnt lgkmcnt(0)")
    for i in rd(0, 0): k(i)
    if opt.get("k1_late", 1): late_setup()
    k.label("K1H_LOOP")
    f = Merge()
    for odd in range(2):
        if odd:
            xa = [f"v_xor_b32 v{x}, s77, v{x}" for x in (44, 4, 5, 6, 7)]
            xb = [f"v_xor_b32 v{x}, s77, v{x}" for x in (45, 8, 9, 10, 11)]
            r = rd(1, odd)
            f.add(*[a + "\n" + b for a, b in zip(r[:5], xa)], *r[5:], *xb, *stats_publish(SUM, GRAM, T, 4))
        else: f.add(*rd(1, odd))
        mm(0, f)
        if opt.get("stamps") == 2:
            k._out("s_memrealtime s[14:15]"); k._out(f"s_lshl_b32 s16, s78, 1"); k._out(f"s_add_u32 m0, s16, {odd}")
        k.wait_lg()
        if opt.get("stamps") == 2: k._out("s_waitcnt lgkmcnt(0)"); k._out("v_writelane_b32 v250, s14, m0")
        k.barrier()
        if opt.get("stamps") == 2: k._out("s_memrealtime s[14:15]"); k._out("s_waitcnt lgkmcnt(0)"); k._out("v_writelane_b32 v251, s14, m0")
        f.add(*rd(0, 1 - odd))
        if odd: f.add("s_add_u32 s78, s78, 1\ns_cmp_lt_u32 s78, 4")
        mm(1, f)
    k("s_cbranch_scc1 K1H_LOOP")
    if opt.get("stamps") == 3:
        k._out("s_memtime s[10:11]"); k._out("s_memrealtime s[12:13]"); k._out("s_waitcnt lgkmcnt(0)")
        k._out("s_sub_u32 s10, s10, s14"); k._out("s_sub_u32 s11, s12, s16")
    k.stamps.mark()
    k(f"s_mov_b32 exec_lo, 0x10001\ns_mov_b32 exec_hi, 0x10001\nds_write_b128 v48, {vr(CSA)}\nds_write_b128 v48, {vr(CSA+4)} offset:64\ns_mov_b64 exec, -1")
    k.wait_lg(); k.barrier()
    for t in range(4): k(f"ds_read_b64 {vr(REC + 2*t, 2)}, v17 offset:{128*t}")
    for c in range(2): k(f"ds_read_b128 {vr(CS + 4*c)}, v49 offset:{64*c}")
    k.stamps.mark()
    if opt.get("x_twice"): k("s_mov_b32 s19, 0"); k.wait_lg(); k.label("TWICE"); k("s_mov_b32 s7, s22")
    n = 0
    for c in range(4):
        cs = CSA + 4*c if c < 2 else CS + 4*(c - 2)
        for rwl in range(2):
            A = ACC + 16*c + 8*rwl
            tb = BF + 12*(n & 1); n += 1
            pk = tb + 8
            pr = [(tau, p) for tau in range(2) for p in range(2)]
            R = lambda tau: REC + 4*rwl + 2*tau
            for tau, p in pr: k(f"v_pk_fma_f32 {vr(A+4*tau+2*p, 2)}, {vr(R(tau), 2)}, {vr(cs+2*p, 2)}, {vr(A+4*tau+2*p, 2)} op_sel_hi:[0,1,1]")
            for tau, p in pr: k(f"v_pk_mul_f32 {vr(A+4*tau+2*p, 2)}, {vr(A+4*tau+2*p, 2)}, {vr(R(tau), 2)} op_sel:[0,1] op_sel_hi:[1,1]")
            for e in range(8): k(f"v_exp_f32 v{tb+e}, v{A+e}")
            for e in range(4): k(f"v_pk_add_f32 {vr(tb+2*e, 2)}, {vr(tb+2*e, 2)}, 1.0 op_sel_hi:[1,0]")
            for e in range(8): k(f"v_rcp_f32 v{tb+e}, v{tb+e}")
            for e in range(4): k(f"v_pk_mul_f32 {vr(A+2*e, 2)}, {vr(A+2*e, 2)}, {vr(tb+2*e, 2)}")
            for e in range(4): k(f"v_cvt_pk_bf16_f32 v{pk+e}, v{A+2*e}, v{A+2*e+1}")
            k(f"v_permlane16_swap_b32 v{pk}, v{pk+2}\nv_permlane16_swap_b32 v{pk+1}, v{pk+3}")
            k(f"buffer_store_dwordx4 {vr(pk)}, v18, s[36:39], s{84+4*rwl+c} offen {ST}")
    k.stamps.mark()
    if opt.get("x_twice"): k("s_add_u32 s19, s19, 1\ns_cmp_lt_u32 s19, 2\ns_cbranch_scc1 TWICE")
    if opt.get("stamps") == 2:
        k(f"s_lshl_b32 s22, s2, 3\ns_add_u32 s22, s22, s3\ns_lshl_b32 s22, s22, 7\ns_add_u32 s22, s22, {STAMP + 65536*8}\nv_lshl_add_u32 v1, v1, 2, s22\ns_mov_b64 exec, 0xff")
        k._out("global_store_dword v1, v250, s[20:21]"); k._out("global_store_dword v1, v251, s[20:21] offset:32"); k("s_mov_b64 exec, -1")
    k.stamps.n = 5 if opt.get("stamps") != 3 else 8
    k.stamps.flush(0)

def mma_f(k, opt):
    ST = opt.get("k1_storey", "sc1")
    k.stamps.reset(1)
    ONES, T, XL, U, BF, SUM, GRAM, ACC = 0, 4, 16, 32, 48, 112, 120, 128
    RR = 32
    k(f"""
    s_lshl_b32 s74, s3, 12
    v_lshrrev_b32 v23, 1, v3
    v_xor_b32 v23, v23, v2
    v_lshl_add_u32 v8, v3, 7, s74
    v_lshl_add_u32 v8, v23, 4, v8
    v_xor_b32 v9, 64, v8
    v_add_u32 v12, 0x4000, v46
    v_lshrrev_b32 v26, 3, v1
    v_lshlrev_b32 v11, 14, v26
    v_sub_u32 v26, v21, v26
    v_and_b32 v26, 3, v26
    v_lshl_or_b32 v11, v26, 4, v11
    v_and_b32 v26, 4, v0
    v_lshl_or_b32 v11, v26, 4, v11
    s_and_b32 s63, s58, 12
    s_add_u32 s63, s63, s3
    s_and_b32 s84, s58, 3
    s_lshl2_add_u32 s63, s63, s84
    s_lshl_b32 s63, s63, 7
    s_xor_b32 s84, s56, 1
    s_lshl_b32 s84, s84, 13
    s_add_u32 s84, s84, s63
    s_add_u32 s84, s84, {WS_Y1}
    s_lshl_b32 s53, s3, 12
    v_lshrrev_b32 v26, 1, v3
    v_add_u32 v26, v26, v2
    v_and_b32 v26, 3, v26
    v_lshl_add_u32 v14, v3, 6, s53
    v_lshl_add_u32 v14, v26, 4, v14
    v_add_u32 v15, s53, v46
    s_mov_b32 s85, 0x20000
    s_lshl_b32 s63, s3, 7
    s_add_u32 s63, s63, {SC + 1024}
    v_lshl_add_u32 v10, v2, 4, s63
    s_mov_b32 s88, 0xffff0000
    s_lshl_b32 s86, s56, 31
    s_or_b32 s86, s86, 1.0
    s_mov_b32 s77, 0x10000
    s_mov_b32 s78, 0
    s_lshl_b32 s63, s3, 8
    """)
    stats_setup(k, ONES)
    for i in range(SUM, ACC + 128, 2): k(f"v_pk_mov_b32 {vr(i, 2)}, 0, 0")
    def make_u(h):
        o = [f"ds_read_b128 {vr(XL + 8*t + 4*hi)}, v{8+h} offset:{2048*t + 32768*hi}" for t in range(2) for hi in range(2)]
        o += [""]*opt.get("k1_fdelay", 6)
        for t in range(2):
            for e in range(4):
                a, b = XL + 8*t + e, XL + 8*t + 4 + e
                o += [f"v_lshlrev_b32 v{T}, 16, v{a}", f"v_and_b32 v{T+1}, s88, v{a}", f"v_lshlrev_b32 v{T+2}, 16, v{b}", f"v_and_b32 v{T+3}, s88, v{b}",
                      f"v_fmac_f32 v{T}, s86, v{T+2}", f"v_fmac_f32 v{T+1}, s86, v{T+3}", f"v_cvt_pk_bf16_f32 v{U+8*h+4*t+e}, v{T}, v{T+1}"]
        return o
    def stat():
        for t in range(2):
            for hi in range(2):
                x = vr(XL + 8*t + 4*hi)
                yield (SUM + 4*t, vr(ONES), x); yield (GRAM + 4*t, x, x)
    def mm(h, f, nxt, stats, bar=False):
        st = list(stat()) if stats else []
        for c in range(16):
            if bar and c == 9:
                while (len(f.q) % 7) != 0: f.pop(k, 1)
                for i in stats_publish(SUM, GRAM, T, 2): k(i)
            if bar and c == 11:
                k.wait_lg(n=2); k.barrier()
            for t in range(2):
                mfma(k, vr(ACC + 8*c + 4*t), vr(U + 8*h + 4*t), vr(BF + 4*c))
                f.pop(k, 2 if (t == 0 or c == 0) else 1)
            if nxt is not None: k(f"ds_read_b128 {vr(BF + 4*c)}, v12 offset:{nxt + 1024*c}")
            if c >= 3 and st:
                for _ in range(2):
                    d, a, b = st.pop(0); mfma(k, vr(d), a, b); f.pop(k, 2)
        f.flush(k)
    k.stamps.mark()
    k.wait_lg()
    k.barrier()
    for i in make_u(0): k(i)
    for d, a, b in stat(): mfma(k, vr(d), a, b)
    k.barrier()
    for c in range(16): k(f"ds_read_b128 {vr(BF + 4*c)}, v12 offset:{1024*c}")
    k.wait_lg(), k.nop(2)
    k("s_branch K1F_ENTRY")
    k.label("K1F_LOOP")
    k.barrier()
    f = Merge(); f.add(*make_u(0))
    mm(1, f, 0, True)
    k.label("K1F_ENTRY")
    f.add(*make_u(1))
    mm(0, f, 32768, True, bar=True)
    k(f"v_xor_b32 v8, s77, v8\nv_xor_b32 v9, s77, v9\nv_xor_b32 v12, s77, v12\ns_add_u32 s78, s78, 1\ns_cmp_lt_u32 s78, 4")
    k.wait_lg()
    k("s_cbranch_scc1 K1F_LOOP")
    k.stamps.mark()
    k.barrier()
    for t in range(2): k(f"ds_read_b128 {vr(RR + 4*t)}, v10 offset:{64*t}")
    k.stamps.mark()
    def unit(c):
        A = ACC + 8*c
        par = c & 3
        tb = SUM + 4*par
        pk = XL + 4*par
        o = [f"v_pk_mul_f32 {vr(A+2*e, 2)}, {vr(A+2*e, 2)}, {vr(RR+2*e, 2)}" for e in range(4)]
        o += [f"v_cvt_pk_bf16_f32 v{pk+e}, v{A+2*e}, v{A+2*e+1}" for e in range(4)]
        return o, f"ds_write_b128 v14, {vr(pk)} offset:{1024*par}\nds_read_b128 {vr(tb)}, v15 offset:{1024*par}", f"buffer_store_dwordx4 {vr(tb)}, v11, s[36:39], s84 offen {ST}\ns_add_u32 s84, s84, s85"
    pend = []
    LAG = 3
    for c in range(16 + LAG):
        f = Merge()
        if c >= LAG:
            a, b, st_ = unit(c - LAG)
            f.add(*a)
            if len(pend) == 3: f.add(pend.pop(0))
            f.add(b); pend.append(st_)
        if c < 16:
            for t in range(2):
                mfma(k, vr(ACC + 8*c + 4*t), vr(U + 8 + 4*t), vr(BF + 4*c))
                f.pop(k, 4)
        f.flush(k)
    pend = "\n".join(pend)
    k(pend)
    k.stamps.mark()
    k.stamps.n = 5
    k.stamps.flush(0)
```

```python
from k1 import *
from model import WS_P
XCH, FLG = 131072, 131072 + 8192

def build_k2(opt):
    k = Prog("k2_kernel", 256, 512, lds=FLG + 64, vgpr=256)
    ST = opt.get("k2_store", "sc1")
    if opt.get("k2_map", 0):
        MAP = "s_and_b32 s56, s2, 1\ns_lshr_b32 s59, s2, 7\ns_lshl1_add_u32 s56, s56, s59\ns_bfe_u32 s58, s2, 0x20001\ns_bfe_u32 s59, s2, 0x20005\ns_lshl2_add_u32 s58, s58, s59\ns_bfe_u32 s60, s2, 0x20003"
    else:
        MAP = "s_bfe_u32 s56, s2, 0x20001\ns_and_b32 s58, s2, 1\ns_lshr_b32 s59, s2, 5\ns_lshl3_add_u32 s58, s58, s59\ns_bfe_u32 s60, s2, 0x20003"
    k(f"""
    s_cmpk_ge_u32 s2, 256
    s_cbranch_scc1 END_{k.name}
    s_load_dwordx2 s[24:25], s[0:1], 64
    v_lshrrev_b32 v4, 6, v0
    v_and_b32 v1, 63, v0
    v_readfirstlane_b32 s3, v4
    v_lshlrev_b32 v5, 4, v1
    s_mov_b32 s26, 0x2000000
    s_mov_b32 s27, 0x20000
    {MAP}
    v_mov_b32 v6, {FLG}
    """)
    if opt.get("stamps"): k("s_load_dwordx2 s[20:21], s[0:1], 64")
    k(f"v_mov_b32 v8, 0\nv_and_b32 v9, 15, v0\nv_lshl_add_u32 v9, v9, 2, v6\nds_write_b32 v9, v8")
    k._out("s_waitcnt lgkmcnt(0)"); k.S.lg = []; k.S.smem = []
    k.barrier()
    k("s_cmp_lt_u32 s3, 2\ns_cbranch_scc1 FFT_WAVE\ns_cmp_lt_u32 s3, 6\ns_cbranch_scc1 GEMM_WAVE")
    snap = k.snapshot()
    AH = opt.get("k2_ahead", 2)
    k(f"""
    s_setprio {opt.get('k2_lprio', 3)}
    s_and_b32 s54, s3, 1
    s_cmp_eq_u32 s54, 0
    s_cselect_b32 s61, s58, s60
    s_cselect_b32 s62, 0, {WS_W2P}
    s_mul_i32 s63, s56, 14
    s_mul_i32 s61, s61, 56
    s_add_u32 s61, s61, s63
    s_lshl_b32 s61, s61, 13
    s_add_u32 s61, s61, s62
    s_add_u32 s62, s61, {14*8192}
    s_mul_i32 s63, s60, 7
    s_lshr_b32 s63, s63, 1
    s_mul_i32 s64, s59, 7
    s_lshr_b32 s64, s64, 2
    s_add_u32 s63, s63, s64
    s_mul_i32 s63, s63, {opt.get("k2_rot", 0)}
    s_cmp_ge_u32 s63, 14
    s_cselect_b32 s64, 14, 0
    s_sub_u32 s63, s63, s64
    s_mov_b32 s64, s61
    s_lshl_b32 s63, s63, 13
    s_add_u32 s61, s61, s63
    s_lshl_b32 s73, s54, 13
    s_mov_b32 s72, 0x1ffff
    v_add_u32 v7, 16, v6
    v_lshl_add_u32 v6, s54, 2, v6
    """)
    def step():
        for hf in range(2):
            k("s_mov_b32 m0, s73\ns_addk_i32 s73, 0x3000" if hf else "s_mov_b32 m0, s73\ns_addk_i32 s73, 0x1000")
            for i in range(4): k(f"buffer_load_dwordx4 v5, s[24:27], s61 offen offset:{1024*i} lds")
            k(f"s_addk_i32 s61, 0x1000")
        k("s_and_b32 s73, s73, s72\ns_cmp_eq_u32 s61, s62\ns_cselect_b32 s61, s64, s61")
    step(); step()
    k._out("s_waitcnt vmcnt(8)"); k.S.vm = []
    k("v_mov_b32 v12, 1\nds_write_b32 v6, v12")
    for _ in range(AH - 1): step()
    k(f"s_mov_b32 s78, 2\ns_mov_b32 s79, {AH - 6}")
    k.label("K2L_LOOP")
    L = k.newlabel("FREE")
    k(f"s_cmp_lt_i32 s79, 1\ns_cbranch_scc1 {L}")
    spin_until(k, "s79", 7, "SPL", tmp_v=8, width=4)
    k.label(L)
    step()
    if opt.get("stamps") == 2:
        k._out("s_memrealtime s[10:11]"); k._out("s_waitcnt lgkmcnt(0)"); k._out("s_mov_b32 m0, s78"); k._out("s_nop 0"); k._out("v_writelane_b32 v251, s10, m0")
    k._out(f"s_waitcnt vmcnt({8*AH})"); k.S.vm = []
    if opt.get("stamps") == 2:
        k._out("s_memrealtime s[10:11]"); k._out("s_waitcnt lgkmcnt(0)"); k._out("v_writelane_b32 v250, s10, m0")
    k(f"v_mov_b32 v12, s78\nds_write_b32 v6, v12\ns_add_u32 s78, s78, 1\ns_add_u32 s79, s79, 1\ns_cmp_lt_u32 s78, {15 - AH}\ns_cbranch_scc1 K2L_LOOP")
    for i in range(AH):
        k._out(f"s_waitcnt vmcnt({8*(AH - 1 - i)})")
        k(f"v_mov_b32 v{12+i}, {15 - AH + i}\nds_write_b32 v6, v{12+i}")
    if opt.get("stamps") == 2:
        k(f"s_lshl_b32 s22, s2, 3\ns_add_u32 s22, s22, s3\ns_lshl_b32 s22, s22, 7\ns_add_u32 s22, s22, {STAMP + 65536*4}\nv_lshl_add_u32 v1, v1, 2, s22\ns_mov_b64 exec, 0xffff")
        k._out("global_store_dword v1, v250, s[20:21]"); k._out("global_store_dword v1, v251, s[20:21] offset:64")
        k.maxv = 251
    k("s_endpgm")

    k.label("GEMM_WAVE"); k.restore(snap)
    st = Stamps(k, opt.get('stamps'), 1, 240)
    ACC, OP = 32, 96
    k(f"""
    s_setprio {opt.get("k2_gprio", 2)}
    s_sub_u32 s3, s3, 2
    s_and_b32 s54, s3, 1
    s_lshr_b32 s55, s3, 1
    s_lshl_b32 s63, s54, 12
    v_add_u32 v8, s63, v5
    s_lshl_b32 s63, s55, 12
    s_addk_i32 s63, 0x2000
    v_add_u32 v9, s63, v5
    s_lshl_b32 s63, s3, 2
    s_add_u32 s63, s63, {FLG + 16}
    v_mov_b32 v7, s63
    s_lshl1_add_u32 s63, s58, s54
    s_lshl_b32 s64, s56, 5
    s_add_u32 s63, s63, s64
    s_lshl1_add_u32 s64, s60, s55
    s_lshl3_add_u32 s63, s63, s64
    s_lshl_b32 s63, s63, 13
    s_add_u32 s61, s63, {WS_P}
    s_add_u32 s62, s61, 0x1000
    s_mov_b32 s71, 0x8000
    s_mov_b32 s72, 0x1ffff
    s_mov_b32 s78, 1
    """)
    for i in range(ACC, ACC + 64, 2): k(f"v_pk_mov_b32 {vr(i, 2)}, 0, 0")
    st.mark()
    def rd(p, off):
        o = []
        for i in range(4):
            o += [f"ds_read_b128 {vr(OP + 32*p + 16 + 4*i)}, v9 offset:{off + 1024*i}", f"ds_read_b128 {vr(OP + 32*p + 4*i)}, v8 offset:{off + 1024*i}"]
        return [o[0], o[1], o[3], o[5], o[7], o[2], o[4], o[6]]
    spin_until(k, "1", 6, "SPG", tmp_v=12, width=2, sleep=1)
    for i in rd(0, 0): k(i)
    k(f"ds_read_b64 {vr(12, 2)}, v6")
    FC = opt.get("k2_fc", 4)
    slow = []
    k.label("K2G_LOOP")
    for p in range(2):
        n = 0
        f = Merge()
        for c in range(4):
            for T in range(4):
                mfma(k, vr(ACC + 16*c + 4*T), vr(OP + 32*p + 16 + 4*c), vr(OP + 32*p + 4*T))
                if n == 0: k(f"v_mov_b32 v11, s78\ns_add_u32 s78, s78, 1\ns_min_u32 s79, s78, 14")
                if n == 1 and p == 1: k("v_add_u32 v8, s71, v8\nv_add_u32 v9, s71, v9")
                if n == 2 and p == 1: k("v_and_b32 v8, s72, v8\nv_and_b32 v9, s72, v9")
                if n == FC: k("v_min_u32 v12, v12, v13\nds_write_b32 v7, v11")
                if n == FC + 1: k("v_readfirstlane_b32 s52, v12")
                if n == FC + 2:
                    Ls, Lb = k.newlabel("SLOW"), k.newlabel("BACK")
                    k(f"s_cmp_lt_u32 s52, s79\ns_cbranch_scc1 {Ls}")
                    k.label(Lb); slow.append((Ls, Lb))
                    if opt.get("stamps") == 2:
                        k._out("s_memrealtime s[10:11]"); k._out("s_waitcnt lgkmcnt(0)"); k._out("s_mov_b32 m0, s78"); k._out("s_nop 0"); k._out("v_writelane_b32 v250, s10, m0")
                    f.add(*rd(1 - p, 16384*(1 - p)), f"ds_read_b64 {vr(12, 2)}, v6")
                f.pop(k, opt.get('k2_pop', 1))
                n += 1
        f.flush(k)
    k("s_cmp_lt_u32 s78, 15\ns_cbranch_scc1 K2G_LOOP")
    st.mark()
    for c in range(4):
        for e in range(2):
            pk = OP + 8*c + 4*e
            for i in range(4): k(f"v_cvt_pk_bf16_f32 v{pk+i}, v{ACC+16*c+8*e+2*i}, v{ACC+16*c+8*e+2*i+1}")
            k(f"buffer_store_dwordx4 {vr(pk)}, v5, s[24:27], s{61 + c//2} offen offset:{2048*(c & 1) + 1024*e} {ST}")
    st.mark()
    if opt.get("stamps") == 2:
        k(f"s_lshl_b32 s22, s2, 3\ns_add_u32 s22, s22, s3\ns_lshl_b32 s22, s22, 7\ns_add_u32 s22, s22, {STAMP + 65536*4}\nv_lshl_add_u32 v1, v1, 2, s22\ns_mov_b64 exec, 0xffff")
        k._out("global_store_dword v1, v250, s[20:21]"); k("s_mov_b64 exec, -1")
    st.flush(0)
    k("s_endpgm")
    for Ls, Lb in slow:
        k.label(Ls)
        k._out("s_sleep 1"); k._out("ds_read_b64 v[12:13], v6"); k._out("s_waitcnt lgkmcnt(0)"); k._out("v_min_u32 v12, v12, v13"); k._out("s_nop 0")
        k._out("v_readfirstlane_b32 s52, v12"); k._out("s_nop 3"); k._out("s_cmp_lt_u32 s52, s79"); k._out(f"s_cbranch_scc1 {Ls}"); k._out(f"s_branch {Lb}")

    k.label("FFT_WAVE"); k.restore(snap)
    st = Stamps(k, opt.get('stamps'), 3, 240)
    if opt.get("x_nofft"): k("s_endpgm")
    CT, EO, Z, D0, OPS, TW, WR, TM = 16, 64, 72, 120, 152, 176, 208, 224
    def cf(kind, fn, u): return vr(CT + 4*({"E": 0, "O": 4, "Op": 8}[kind] + 2*fn + u))
    def D(q, c): return D0 + (q*2 + c)*4
    k(f"""
    s_setprio {opt.get('k2_fftprio0', 1)}
    s_lshl_b32 s61, s2, 13
    s_add_u32 s62, s61, {WS_Y1}
    s_add_u32 s63, s62, 0x1000
    s_getpc_b64 s[28:29]
    s_add_u32 s28, s28, CTAB@rel32@lo+4
    s_addc_u32 s29, s29, CTAB@rel32@hi+12
    s_movk_i32 s30, 0x4000
    s_mov_b32 s31, 0x20000
    s_lshl_b32 s66, s3, 10
    s_add_u32 s67, s66, 0x3000
    s_cmpk_eq_u32 s2, 255
    s_cselect_b32 s67, s66, s67
    s_add_u32 s64, s61, s66
    s_add_u32 s64, s64, {WS_WT}
    s_add_u32 s65, s64, 0x1000
    """)
    if opt.get("k2_touch", 0):
        k(f"v_lshlrev_b32 v8, 7, v1\ns_mul_i32 s77, s3, {WS_WT - WS_Y1}\ns_add_u32 s77, s77, s62\nbuffer_load_dword v236, v8, s[24:27], s77 offen")
    k("v_and_b32 v7, 60, v1\nv_lshlrev_b32 v7, 5, v7\nv_and_b32 v4, 3, v1\nv_lshl_or_b32 v7, v4, 4, v7")
    def first_loads():
        for pl in range(0 if opt.get("x_noz") else 2):
            for tb in range(4): k(f"buffer_load_dwordx4 {vr(Z + 16*pl + 4*tb)}, v7, s[24:27], s{62 + tb//2} offen offset:{2048*(tb & 1) + 64*pl}")
        for fn in range(0 if opt.get("x_noct") else 2): k(f"buffer_load_dwordx4 {vr(EO + 4*fn)}, v5, s[28:31], s67 offen offset:{2048*fn}")
    if not opt.get('k2_late', 1): first_loads()
    k("s_movk_i32 s68, 0x1000\ns_movk_i32 s69, 0x2000")
    def cload(i):
        if not opt.get("x_noct"): k(f"buffer_load_dwordx4 {vr(CT + 4*i)}, v5, s[28:31], {['0', 's68', 's69'][i // 4]} offen offset:{1024*(i % 4)}")
    st.mark()
    k(f"""
    s_setprio {opt.get('k2_fftprio', 0)}
    v_lshrrev_b32 v2, 4, v1
    v_and_b32 v3, 15, v1
    s_lshl_b32 s70, s3, 4
    v_add_u32 v8, s70, v3
    v_cvt_f32_u32 v8, v8
    v_mul_f32 v8, {fx(1/2048)}, v8
    v_mul_f32 v9, {fx(13.0)}, v8
    v_lshlrev_b32 v10, 2, v2
    v_cvt_f32_u32 v11, v10
    v_mul_f32 v11, v11, v8
    s_mov_b32 s71, 0x80008000
    s_mov_b32 s72, 0xffff0000
    """)
    for i in range(16):
        k(f"v_cos_f32 v{TW+2*i}, v11\nv_sin_f32 v{TW+2*i+1}, v11")
        if i < 15: k(f"v_add_f32 v11, v11, v{9 if i % 4 == 3 else 8}")
        if opt.get('k2_late', 1) and i == opt.get('k2_late_i', 7): first_loads()
    for i in range(8): cload(i)
    k(f"""
    v_add_u32 v10, s70, v10
    v_cvt_f32_u32 v10, v10
    v_cvt_f32_u32 v12, v3
    s_lshl_b32 s73, s3, 5
    s_xor_b32 s74, s73, 32
    v_cvt_f32_u32 v13, s73
    v_cvt_f32_u32 v14, s74
    v_add_f32 v13, v13, v12
    v_add_f32 v14, v14, v12
    v_mul_f32 v13, {fx(1/2048)}, v13
    v_mul_f32 v14, {fx(1/2048)}, v14
    s_lshl_b32 s75, s3, 31
    s_or_b32 s75, s75, 1.0
    s_xor_b32 s76, s75, 0x80000000
    s_mul_i32 s77, s3, 0x1008
    s_add_u32 s77, s77, {XCH}
    v_add_u32 v8, s77, v5
    v_xor_b32 v9, 0x1000, v8
    v_and_b32 v12, -9, v8
    s_lshl_b32 s77, s3, 2
    s_add_u32 s77, s77, {FLG + 32}
    v_mov_b32 v15, s77
    v_xor_b32 v7, 4, v15
    v_lshlrev_b32 v4, 9, v2
    v_lshl_add_u32 v4, v3, 4, v4
    s_lshl_b32 s77, s3, 12
    s_add_u32 s62, s61, s77
    s_add_u32 s62, s62, {WS_Y2}
    s_add_u32 s63, s62, 0x1000
    """)
    def mm(d, a, b, first): mfma(k, vr(d), a, b, first)
    def twmul(q, tw, fwd):
        for r in range(4):
            re, im, c, s = D(q, 0) + r, D(q, 1) + r, tw + 2*r, tw + 2*r + 1
            a, b = (re, im) if fwd else (im, re)
            k(f"v_mul_f32 v{TM+r}, v{a}, v{s}\nv_mul_f32 v{a}, v{a}, v{c}")
        for r in range(4):
            re, im, c, s = D(q, 0) + r, D(q, 1) + r, tw + 2*r, tw + 2*r + 1
            a, b = (re, im) if fwd else (im, re)
            k(f"v_fmac_f32 v{a}, v{b}, v{s}\nv_fma_f32 v{b}, v{b}, v{c}, -v{TM+r}")
    for i in range(16): k(f"v_xor_b32 v{Z+32+i}, s71, v{Z+i}")
    for tb in range(4):
        zr, zi, nzr = vr(Z + 4*tb), vr(Z + 16 + 4*tb), vr(Z + 32 + 4*tb)
        mm(D(tb, 0), zr, vr(EO), True);  mm(D(tb, 1), zi, vr(EO), True)
        mm(D(tb, 0), zi, vr(EO + 4), False); mm(D(tb, 1), nzr, vr(EO + 4), False)
    for u in range(0 if opt.get("x_now") else 4): k(f"buffer_load_dwordx4 {vr(WR + 4*u)}, v5, s[24:27], s{64 + u//2} offen offset:{2048*(u & 1)}")
    for i in range(8, 12): cload(i)
    def F2(kind, pl): return OPS + (kind*3 + pl)*4
    for q in range(4): twmul(q, TW + 8*q, True)
    for c in range(2):
        for tb in range(2):
            for h in range(2):
                a, b = D(tb, c) + 2*h, D(tb + 2, c) + 2*h
                tm = TM + 4 + 2*h
                k(f"v_add_f32 v{tm}, v{a}, v{b}\nv_add_f32 v{tm+1}, v{a+1}, v{b+1}\nv_sub_f32 v{b}, v{a}, v{b}\nv_sub_f32 v{b+1}, v{a+1}, v{b+1}")
                k(f"v_cvt_pk_bf16_f32 v{F2(0,c)+2*tb+h}, v{tm}, v{tm+1}\nv_cvt_pk_bf16_f32 v{F2(1,c)+2*tb+h}, v{b}, v{b+1}")
    for kind in range(2):
        for i in range(4): k(f"v_xor_b32 v{F2(kind,2)+i}, s71, v{F2(kind,0)+i}")
    fill = Merge()
    for se in range(2):
        for tb in range(2):
            if tb: fill.add(f"v_add_f32 v{13+se}, {fx(16/2048)}, v{13+se}")
            fill.add(f"v_mul_f32 v11, v10, v{13+se}")
            for r in range(4):
                i = (se*2 + tb)*4 + r
                fill.add(f"v_cos_f32 v{TW+2*i}, v11", f"v_sin_f32 v{TW+2*i+1}, v11")
                if r < 3: fill.add(f"v_add_f32 v11, v11, v{13+se}")
    for u in range(4):
        kind, cn = (0, "E") if u < 2 else (1, "O")
        xr, xi, nxr = vr(F2(kind, 0)), vr(F2(kind, 1)), vr(F2(kind, 2))
        for d, a, b, fs in ((0, 0, xr, True), (1, 0, xi, True), (0, 1, xi, False), (1, 1, nxr, False)):
            mm(D(u, d), cf(cn, a, u & 1), b, fs); fill.pop(k, 2)
    fill.flush(k)
    st.mark()
    for u in range(4):
        w = WR + 4*u
        for r in range(4):
            op = "v_and_b32 v%d, s72, v%d" if r & 1 else "v_lshlrev_b32 v%d, 16, v%d"
            k(op % (TM + r, w + (r >> 1))); k(op % (TM + 4 + r, w + 2 + (r >> 1)))
        for r in range(4):
            re, im = D(u, 0) + r, D(u, 1) + r
            k(f"v_mul_f32 v{TM+8+r}, v{im}, v{TM+4+r}\nv_mul_f32 v{im}, v{im}, v{TM+r}")
        for r in range(4):
            re, im = D(u, 0) + r, D(u, 1) + r
            k(f"v_fmac_f32 v{im}, v{re}, v{TM+4+r}\nv_fma_f32 v{re}, v{re}, v{TM+r}, -v{TM+8+r}")
        for h in range(2):
            re, im = D(u, 0) + 2*h, D(u, 1) + 2*h
            o = 2*(u & 1) + h
            k(f"v_cvt_pk_bf16_f32 v{F2(u>>1,0)+o}, v{re}, v{re+1}\nv_cvt_pk_bf16_f32 v{F2(u>>1,1)+o}, v{im}, v{im+1}")
    for kind in range(2):
        for i in range(4): k(f"v_xor_b32 v{F2(kind,2)+i}, s71, v{F2(kind,1)+i}")
    for par, cn in ((0, "E"), (1, "Op")):
        zr, zi, nzi = vr(F2(par, 0)), vr(F2(par, 1)), vr(F2(par, 2))
        for tb in range(2):
            q = tb + 2*par
            mm(D(q, 0), zr, cf(cn, 0, tb), True);  mm(D(q, 1), zi, cf(cn, 0, tb), True)
            mm(D(q, 0), nzi, cf(cn, 1, tb), False); mm(D(q, 1), zr, cf(cn, 1, tb), False)
    for tb in range(2):
        for c in range(2):
            for r in range(4):
                a, b = D(tb, c) + r, D(tb + 2, c) + r
                k(f"v_mul_f32 v{TM+r}, s75, v{b}")
            for r in range(4):
                a, b = D(tb, c) + r, D(tb + 2, c) + r
                k(f"v_sub_f32 v{b}, v{a}, v{TM+r}\nv_add_f32 v{a}, v{a}, v{TM+r}")
    for se in (1, 0):
        for tb in range(2):
            q = tb + 2*se
            twmul(q, TW + 8*(se*2 + tb), False)
            for c in range(2):
                pk = OPS + 4*q + 2*c
                k(f"v_cvt_pk_bf16_f32 v{pk}, v{D(q,c)}, v{D(q,c)+1}\nv_cvt_pk_bf16_f32 v{pk+1}, v{D(q,c)+2}, v{D(q,c)+3}")
                k(f"ds_write_b64 v{9 if se else 8}, {vr(pk, 2)} offset:{2048*tb + 1024*c}")
        if se == 1: k(f"v_mov_b32 v11, 1\nds_write_b32 v15, v11")
    spin_until(k, "1", 7, "SPF", tmp_v=11)
    F3 = Z
    for tb in range(2):
        for c in range(2): k(f"ds_read_b128 {vr(F3 + 12*tb + 4*c)}, v12 offset:{2048*tb + 1024*c}")
    for tb in range(2):
        for i in range(4): k(f"v_xor_b32 v{F3+12*tb+8+i}, s71, v{F3+12*tb+4+i}")
        tr, ti, nti = vr(F3 + 12*tb), vr(F3 + 12*tb + 4), vr(F3 + 12*tb + 8)
        for ta in range(2):
            q = 2*tb + ta
            mm(D(q, 0), cf("E", 0, ta), tr, True);  mm(D(q, 1), cf("E", 0, ta), ti, True)
            mm(D(q, 0), cf("E", 1, ta), nti, False); mm(D(q, 1), cf("E", 1, ta), tr, False)
    for tb in range(2):
        for ta in range(2):
            pk = OPS + 4*(tb*2 + ta)
            for c in range(2):
                a = D(2*tb + ta, c)
                k(f"v_cvt_pk_bf16_f32 v{pk+2*c}, v{a}, v{a+1}\nv_cvt_pk_bf16_f32 v{pk+2*c+1}, v{a+2}, v{a+3}")
            k(f"buffer_store_dwordx4 {vr(pk)}, v4, s[24:27], s62 offen offset:{2048*tb + 256*ta} {ST}")
    st.flush(0)
    k.label(f"END_{k.name}")
    k("s_endpgm")
    return k
```

```python
from k1 import *
from model import WS_P
L_T = 32768

def build_k3(opt):
    k = Prog("k3_kernel", 256, 512, lds=opt.get("k3_lds", 86016), vgpr=256)
    st = Stamps(k, opt.get('stamps'), 2, 240)
    FB, ACC, BF, XG, TM, PP, G, CH = 32, 96, 104, 120, 124, 140, 156, 164
    k(f"""
    s_cmpk_ge_u32 s2, 256
    s_cbranch_scc1 END_{k.name}
    s_load_dwordx2 s[24:25], s[0:1], 64
    s_load_dwordx2 s[36:37], s[0:1], 0
    s_load_dwordx2 s[40:41], s[0:1], 48
    v_lshrrev_b32 v4, 6, v0
    v_and_b32 v1, 63, v0
    v_readfirstlane_b32 s3, v4
    s_mov_b32 s26, 0x2000000
    s_mov_b32 s27, 0x20000
    s_and_b32 s56, s2, 7
    s_lshr_b32 s59, s2, 5
    s_lshl3_add_u32 s58, s56, s59
    s_bfe_u32 s60, s2, 0x20003
    v_lshrrev_b32 v26, 3, v1
    v_lshlrev_b32 v6, 13, v26
    v_and_b32 v26, 4, v26
    v_and_b32 v27, 7, v0
    v_xor_b32 v26, v27, v26
    v_lshl_add_u32 v6, v26, 4, v6
    s_lshl_b32 s62, s58, 7
    s_lshl_b32 s63, s3, 18
    s_add_u32 s62, s62, s63
    s_add_u32 s62, s62, {WS_Y2}
    s_lshl_b32 s75, s3, 12
    v_add_u32 v7, {65536 - 1024}, v6
    v_add_u32 v8, {2*(65536 - 1024)}, v6
    v_add_u32 v9, {3*(65536 - 1024)}, v6
    s_mov_b32 m0, s75
    """)
    if opt.get("stamps"): k("s_load_dwordx2 s[20:21], s[0:1], 64")
    st.mark()
    for i in range(4): k(f"buffer_load_dwordx4 v{6+i}, s[24:27], s62 offen offset:{1024*i} lds", tag="Y")
    k(f"""
    v_lshrrev_b32 v2, 4, v1
    v_and_b32 v3, 15, v0
    s_lshl3_add_u32 s61, s60, s3
    v_lshl_add_u32 v10, s61, 4, v3
    v_cvt_f32_u32 v10, v10
    v_mul_f32 v10, {fx(-1/512)}, v10
    v_mul_f32 v11, {fx(13.0)}, v10
    v_mul_f32 v13, {fx(16.0)}, v10
    v_lshl_add_u32 v12, v2, 2, 1
    v_cos_f32 v13, v13
    v_cvt_f32_u32 v12, v12
    v_mul_f32 v12, v12, v10
    v_add_f32 v13, v13, v13
    v_lshlrev_b32 v5, 4, v1
    s_lshr_b32 s65, s58, 1
    s_lshl2_add_u32 s65, s65, s60
    s_lshl3_add_u32 s65, s65, s3
    s_and_b32 s64, s58, 1
    s_lshl1_add_u32 s65, s65, s64
    s_lshl_b32 s65, s65, 10
    s_add_u32 s65, s65, {WS_P}
    s_mov_b32 s66, 0x200000
    """)
    for i in range(8):
        t = CH + 2*i
        k(f"v_cos_f32 v{t}, v12\nv_sin_f32 v{t+1}, v12")
        if i < 7: k(f"v_add_f32 v12, v12, v{11 if i == 3 else 10}")
        k(f"v_cvt_pk_bf16_f32 v{FB+i}, v{t}, v{t+1}")
    for q in range(4):
        k(f"buffer_load_dwordx4 {vr(PP + 4*q)}, v5, s[24:27], s65 offen")
        if q < 3: k("s_add_u32 s65, s65, s66")
    def gen(s):
        o = []
        old = CH + 8*(s & 1); cur = CH + 8*(1 - (s & 1))
        for e in range(8): o.append(f"v_fma_f32 v{old+e}, v13, v{cur+e}, -v{old+e}")
        for i in range(4): o.append(f"v_cvt_pk_bf16_f32 v{FB+4*s+i}, v{old+2*i}, v{old+2*i+1}")
        return o
    NPRE = opt.get("k3_npre", 16)
    for s in range(2, 8):
        for i in gen(s): k(i)
    k(f"""
    v_lshlrev_b32 v12, 16, v2
    v_lshl_or_b32 v12, v3, 4, v12
    s_bfe_u32 s63, s58, 0x20002
    s_bfe_u32 s64, s58, 0x10001
    s_lshl2_add_u32 s63, s64, s63
    s_lshr_b32 s64, s58, 4
    s_lshl4_add_u32 s63, s63, s64
    s_and_b32 s64, s58, 1
    s_lshl1_add_u32 s63, s63, s64
    s_lshl3_add_u32 s63, s63, s3
    s_lshl2_add_u32 s63, s63, s60
    s_lshl_b32 s63, s63, 8
    s_mov_b32 s38, 0x200000
    s_mov_b32 s39, 0x20000
    s_mov_b32 s42, 0x200000
    s_mov_b32 s43, 0x20000
    """)
    k(f"buffer_load_dwordx4 {vr(XG)}, v12, s[36:39], s63 offen")
    k(f"""
    v_bfe_u32 v24, v0, 3, 1
    v_lshl_add_u32 v24, v2, 2, v24
    v_lshlrev_b32 v24, 7, v24
    v_and_b32 v25, 3, v0
    v_lshl_add_u32 v24, v25, 4, v24
    v_and_b32 v25, 4, v0
    v_lshl_add_u32 v24, v25, 1, v24
    v_and_b32 v25, 16, v0
    v_lshl_add_u32 v28, v25, 2, v24
    v_xor_b32 v29, 64, v28
    v_mul_u32_u24 v14, 272, v3
    v_lshl_add_u32 v14, v2, 3, v14
    s_lshl_b32 s64, s3, 5
    s_add_u32 s64, s64, {L_T}
    v_add_u32 v14, s64, v14
    v_mul_u32_u24 v15, 272, v2
    v_lshl_add_u32 v15, v3, 4, v15
    s_mul_i32 s64, s3, {4*272}
    s_add_u32 s64, s64, {L_T}
    v_add_u32 v15, s64, v15
    s_mov_b32 s66, 0xffff0000
    s_mov_b32 s67, {fx(-0.6931471805599453)}
    """)
    for s in range(8, NPRE):
        for i in gen(s): k(i)
    st.mark()
    fill = Merge()
    for s in range(NPRE, 16): fill.add(*gen(s))
    for i in range(4):
        for q in range(4):
            lo, hi = (G + 2*i, G + 2*i + 1) if q == 0 else (TM + 2*(q & 1), TM + 2*(q & 1) + 1)
            fill.add(f"v_lshlrev_b32 v{lo}, 16, v{PP+4*q+i}", f"v_and_b32 v{hi}, s66, v{PP+4*q+i}")
            if q: fill.add(f"v_add_f32 v{G+2*i}, v{G+2*i}, v{lo}", f"v_add_f32 v{G+2*i+1}, v{G+2*i+1}, v{hi}")
    for e in range(8): fill.add(f"v_exp_f32 v{TM+e}, v{G+e}")
    for e in range(8): fill.add(f"v_mul_f32 v{G+e}, s67, v{G+e}")
    for e in range(8): fill.add(f"v_add_f32 v{TM+e}, 1.0, v{TM+e}")
    for e in range(8): fill.add(f"v_rcp_f32 v{TM+e}, v{TM+e}")
    for e in range(8): fill.add(f"v_mul_f32 v{G+e}, v{G+e}, v{TM+e}")
    def reads(s):
        o = []
        for c in range(2):
            o += [f"ds_read_b64_tr_b16 {vr(BF + 8*(s & 1) + 4*c, 2)}, v{28+c} offset:{s*2048}", f"ds_read_b64_tr_b16 {vr(BF + 8*(s & 1) + 4*c + 2, 2)}, v{28+c} offset:{s*2048 + 256}"]
        return o
    k.wait_vm(tag="Y"); k.barrier()
    st.mark()
    for i in reads(0): k(i)
    for s in range(16):
        rd = reads(s + 1) if s + 1 < 16 else []
        for i in rd: k(i)
        for c in range(2):
            mfma(k, vr(ACC + 4*c), vr(FB + 4*s), vr(BF + 8*(s & 1) + 4*c), s == 0)
            if s >= opt.get("k3_g0", 4): fill.pop(k, 4)
    fill.flush(k)
    st.mark()
    for e in range(8): k(f"v_mul_f32 v{ACC+e}, v{ACC+e}, v{G+e}")
    for e in range(4): k(f"v_cvt_pk_bf16_f32 v{TM+e}, v{ACC+2*e}, v{ACC+2*e+1}")
    for c in range(2): k(f"ds_write_b64 v14, {vr(TM + 2*c, 2)} offset:{16*272*c}")
    for i in range(4): k(f"v_lshlrev_b32 v{G+2*i}, 16, v{XG+i}\nv_and_b32 v{G+2*i+1}, s66, v{XG+i}")
    k.wait_lg(); k.barrier()
    k(f"ds_read_b128 {vr(TM)}, v15")
    U = TM + 4
    for i in range(4):
        u = U + 2*i
        k(f"v_lshlrev_b32 v{u}, 16, v{TM+i}\nv_and_b32 v{u+1}, s66, v{TM+i}\nv_add_f32 v{u}, v{u}, v{G+2*i}\nv_add_f32 v{u+1}, v{u+1}, v{G+2*i+1}\nv_cvt_pk_bf16_f32 v{ACC+i}, v{u}, v{u+1}")
    k(f"buffer_store_dwordx4 {vr(ACC)}, v12, s[40:43], s63 offen {opt.get('k3_store', '')}")
    st.mark()
    st.flush(0)
    k.label(f"END_{k.name}")
    k("s_endpgm")
    return k
```

```python
from asmlib import *
import sys
STAMP = 0x8000000

def prologue(k, nblk):
    k(f"""
    s_cmp_ge_u32 s2, {nblk}
    s_cbranch_scc1 END_{k.name}
    s_memrealtime s[60:61]
    s_load_dwordx16 s[4:19], s[0:1], 0
    s_load_dwordx2 s[20:21], s[0:1], 64
    s_waitcnt lgkmcnt(0)
    """)
def stamp_end(k, slot):
    k(f"""
    s_memrealtime s[62:63]
    s_waitcnt lgkmcnt(0)
    v_mov_b32 v4, s60
    v_mov_b32 v5, s61
    v_mov_b32 v6, s62
    v_mov_b32 v7, s63
    s_lshl_b32 s3, s2, 4
    s_add_u32 s3, s3, {STAMP + slot*4096*4}
    v_mov_b32 v1, s3
    v_cmp_eq_u32 vcc, 0, v0
    s_and_saveexec_b64 s[30:31], vcc
    s_cbranch_execz END_{k.name}
    global_store_dwordx4 v1, v[4:7], s[20:21]
    END_{k.name}:
    s_endpgm
    """)

def reader(name, slot, nwaves, aKB, bKB, amap, bmap, abase, bbase, lds=False, asz=1<<30, bsz=1<<30):
    k = Kernel(name, 256, 64*nwaves, lds=(160*1024 if lds else 0), vgpr=128)
    prologue(k, 256)
    k(abase); k(bbase); k(amap); k(bmap)
    k(f"""
    s_mov_b32 s44, s22
    s_mov_b32 s45, s23
    s_mov_b32 s46, {asz}
    s_mov_b32 s47, 0x20000
    s_mov_b32 s48, s24
    s_mov_b32 s49, s25
    s_mov_b32 s50, {bsz}
    s_mov_b32 s51, 0x20000
    v_lshlrev_b32 v1, 4, v0
    v_lshrrev_b32 v2, 6, v0
    s_nop 0
    v_readfirstlane_b32 s52, v2
    s_nop 3
    s_lshl_b32 s52, s52, 10
    """)
    step = nwaves * 1024
    na, nb = aKB*1024//step, bKB*1024//step
    seq = []
    i = j = 0
    while i < na or j < nb:
        if j >= nb or (i < na and i*nb <= j*na):
            seq.append(("a", i)); i += 1
        else:
            seq.append(("b", j)); j += 1
    r = 0
    ldso = 0
    for (w, idx) in seq:
        srd = "s[44:47]" if w == "a" else "s[48:51]"
        so = "s40" if w == "a" else "s41"
        if lds:
            k(f"s_add_u32 m0, s52, {ldso}\ns_nop 0\nbuffer_load_dwordx4 v1, {srd}, {so} offen lds")
            ldso = (ldso + step) % (160*1024 - (160*1024) % step)
        else:
            k(f"buffer_load_dwordx4 v[{8+4*r}:{11+4*r}], v1, {srd}, {so} offen")
            r = (r + 1) % 28
        k(f"s_add_u32 {so}, {so}, {step}")
    k("s_waitcnt vmcnt(0)\ns_barrier")
    stamp_end(k, slot)
    return k

def writer(name, slot, KB, base_off, flags=""):
    k = Kernel(name, 256, 256, vgpr=16)
    prologue(k, 256)
    k(f"""
    s_add_u32 s44, s20, {base_off}
    s_addc_u32 s45, s21, 0
    s_mov_b32 s46, {256*KB*1024}
    s_mov_b32 s47, 0x20000
    s_mul_i32 s40, s2, {KB*1024}
    v_lshlrev_b32 v1, 4, v0
    """)
    for i in range(KB//4):
        k(f"buffer_store_dwordx4 v[4:7], v1, s[44:47], s40 offen {flags}\ns_add_u32 s40, s40, 4096")
    k("s_waitcnt vmcnt(0)\ns_barrier")
    stamp_end(k, slot)
    return k

X = "s_mov_b32 s22, s4\ns_mov_b32 s23, s5"
W1 = "s_mov_b32 s24, s12\ns_mov_b32 s25, s13"
W2 = "s_mov_b32 s24, s14\ns_mov_b32 s25, s15"
HB = "s_add_u32 s22, s20, 0x1000000\ns_addc_u32 s23, s21, 0"
naiveA = "s_lshr_b32 s40, s2, 4\ns_mul_i32 s40, s40, %d"
naiveB = "s_and_b32 s41, s2, 15\ns_mul_i32 s41, s41, %d"
xcdA = "s_and_b32 s40, s2, 7\ns_lshr_b32 s40, s40, 1\ns_lshl_b32 s40, s40, 2\ns_lshr_b32 s42, s2, 6\ns_add_u32 s40, s40, s42\ns_mul_i32 s40, s40, %d"
xcdB = "s_and_b32 s41, s2, 1\ns_lshl_b32 s41, s41, 3\ns_lshr_b32 s42, s2, 3\ns_and_b32 s42, s42, 7\ns_add_u32 s41, s41, s42\ns_mul_i32 s41, s41, %d"
out = {}
for lds in (False, True):
    for nw in (4, 8):
        for mp, (ma, mb) in (("naive", (naiveA, naiveB)), ("xcd", (xcdA, xcdB))):
            nm = f"g1_{'lds' if lds else 'reg'}_{nw}w_{mp}"
            k = reader("r_kernel", 0, nw, 128, 112, ma % (128*1024), mb % (112*1024), X, W1, lds=lds, asz=2097152, bsz=1835008)
            k2 = reader("r2_kernel", 1, nw, 128, 112, ma % (128*1024), mb % (112*1024), X, W1, lds=lds, asz=2097152, bsz=1835008)
            open(f"../exp/{nm}.s", "w").write(build([k, k2]))
g2A = "s_and_b32 s40, s2, 7\ns_lshl_b32 s40, s40, 2\ns_lshr_b32 s42, s2, 6\ns_add_u32 s40, s40, s42\ns_mul_i32 s40, s40, %d" % (224*1024)
g2B = "s_lshr_b32 s41, s2, 3\ns_and_b32 s41, s41, 7\ns_mul_i32 s41, s41, %d" % (224*1024)
for lds in (False, True):
    for nw in (4, 8):
        w = writer("w_kernel", 0, 28, 0x1000000)
        k = reader("r_kernel", 1, nw, 224, 224, g2A, g2B, HB, W2, lds=lds, asz=256*28*1024, bsz=1835008)
        k2 = reader("r2_kernel", 2, nw, 224, 224, g2A, g2B, HB, W2, lds=lds, asz=256*28*1024, bsz=1835008)
        open(f"../exp/g2_{'lds' if lds else 'reg'}_{nw}w.s", "w").write(build([w, k, k2]))
```

```python
from micro2 import *
def rdr(name, slot, KB, base_off, share):
    k = Kernel(name, 256, 256, vgpr=128)
    prologue(k, 256)
    k(f"""
    s_add_u32 s44, s20, {base_off}
    s_addc_u32 s45, s21, 0
    s_mov_b32 s46, 0x4000000
    s_mov_b32 s47, 0x20000
    s_and_b32 s40, s2, 7
    s_lshr_b32 s41, s2, {3 + (share.bit_length() - 1)}
    s_mul_i32 s40, s40, {32 // share}
    s_add_u32 s40, s40, s41
    s_mul_i32 s40, s40, {KB*1024}
    v_lshlrev_b32 v1, 4, v0
    """)
    for i in range(KB//4):
        k(f"buffer_load_dwordx4 v[{8+4*(i%28)}:{11+4*(i%28)}], v1, s[44:47], s40 offen\ns_add_u32 s40, s40, 4096")
    k("s_waitcnt vmcnt(0)\ns_barrier")
    stamp_end(k, slot)
    return k
B = 0x1000000
for wf, wn in (("", "plain"), ("sc1", "sc1"), ("nt", "nt")):
    w = writer2("w_kernel", 0, 28, B, wf, None)
    for KB, sh in ((28, 1), (112, 4)):
        open(f"../exp/fr_{wn}_{KB}.s", "w").write(build([w, rdr("r_kernel", 1, KB, B, sh)]))
for KB, sh in ((28, 1), (112, 4)):
    e = writer2("w_kernel", 0, 4, 0x3000000, "", None)
    open(f"../exp/fr_cold_{KB}.s", "w").write(build([e, rdr("r_kernel", 1, KB, B, sh)]))
    open(f"../exp/fr_warm_{KB}.s", "w").write(build([rdr("r0_kernel", 0, 28, B + 28*1024*32, 1), rdr("r_kernel", 1, KB, B, sh)]))
```

```python
from micro1 import *

def reader2(name, slot, nwaves, aKB, bKB, amap, bmap, abase, bbase, rot, nchunk, asz, bsz, pre=None, flags=""):
    k = Kernel(name, 256, 64*nwaves, vgpr=128)
    prologue(k, 256)
    k(abase); k(bbase); k(amap); k(bmap); k(rot)
    k(f"""
    s_mov_b32 s44, s22
    s_mov_b32 s45, s23
    s_mov_b32 s46, {asz}
    s_mov_b32 s47, 0x20000
    s_mov_b32 s48, s24
    s_mov_b32 s49, s25
    s_mov_b32 s50, {bsz}
    s_mov_b32 s51, 0x20000
    v_lshlrev_b32 v1, 4, v0
    """)
    step = nwaves * 1024
    ca, cb = aKB*1024//nchunk, bKB*1024//nchunk
    assert ca % step == 0 and cb % step == 0, (ca, cb, step)
    na, nb = ca//step, cb//step
    r = 0
    for c in range(nchunk):
        k(f"s_mul_i32 s53, s43, {ca}\ns_add_u32 s53, s53, s40\ns_mul_i32 s54, s43, {cb}\ns_add_u32 s54, s54, s41")
        i = j = 0
        while i < na or j < nb:
            if j >= nb or (i < na and i*nb <= j*na):
                k(f"buffer_load_dwordx4 v[{8+4*r}:{11+4*r}], v1, s[44:47], s53 offen {flags}\ns_add_u32 s53, s53, {step}"); i += 1
            else:
                k(f"buffer_load_dwordx4 v[{8+4*r}:{11+4*r}], v1, s[48:51], s54 offen\ns_add_u32 s54, s54, {step}"); j += 1
            r = (r + 1) % 28
        k(f"s_add_u32 s43, s43, 1\ns_cmp_ge_u32 s43, {nchunk}\ns_cselect_b32 s43, 0, s43")
    if pre: k(pre)
    k("s_waitcnt vmcnt(0)\ns_barrier")
    stamp_end(k, slot)
    return k

def writer2(name, slot, KB, base_off, flags="", prefetch=None):
    k = Kernel(name, 256, 256, vgpr=128)
    prologue(k, 256)
    k(f"""
    s_add_u32 s44, s20, {base_off}
    s_addc_u32 s45, s21, 0
    s_mov_b32 s46, {256*KB*1024}
    s_mov_b32 s47, 0x20000
    s_mul_i32 s40, s2, {KB*1024}
    v_lshlrev_b32 v1, 4, v0
    """)
    if prefetch:
        k(f"""
        s_mov_b32 s48, s14
        s_mov_b32 s49, s15
        s_mov_b32 s50, 1835008
        s_mov_b32 s51, 0x20000
        """)
        if prefetch == "xcd":
            k("s_lshr_b32 s41, s2, 3\ns_mul_i32 s41, s41, %d" % (56*1024))
            n = 14
        else:
            k("s_mul_i32 s41, s2, %d" % (7*1024))
            n = 2
        for i in range(n):
            k(f"buffer_load_dwordx4 v[{8+4*i}:{11+4*i}], v1, s[48:51], s41 offen\ns_add_u32 s41, s41, 4096")
    for i in range(KB//4):
        k(f"buffer_store_dwordx4 v[4:7], v1, s[44:47], s40 offen {flags}\ns_add_u32 s40, s40, 4096")
    k("s_waitcnt vmcnt(0)\ns_barrier")
    stamp_end(k, slot)
    return k

rot1 = "s_lshr_b32 s43, s2, 6\ns_lshl_b32 s43, s43, 1\ns_lshr_b32 s42, s2, 3\ns_add_u32 s43, s43, s42\ns_and_b32 s43, s43, 7"
rot0 = "s_mov_b32 s43, 0"
for nm, rot in (("rot", rot1), ("norot", rot0)):
    k = reader2("r_kernel", 0, 2, 128, 112, xcdA % (128*1024), xcdB % (112*1024), X, W1, rot, 8, 2097152, 1835008)
    xcdA2 = "s_add_u32 s55, s2, 3\n" + (xcdA % (128*1024)).replace("s_and_b32 s40, s2, 7", "s_and_b32 s40, s55, 7")
    xcdB2 = (xcdB % (112*1024)).replace("s_and_b32 s41, s2, 1", "s_and_b32 s41, s55, 1")
    k2 = reader2("r2_kernel", 1, 2, 128, 112, xcdA2, xcdB2, X, W1, rot, 8, 2097152, 1835008)
    k3 = reader2("r3_kernel", 2, 2, 128, 112, xcdA2, xcdB2, X, W1, rot, 8, 2097152, 1835008)
    open(f"../exp/g1x_{nm}.s", "w").write(build([k, k2, k3]))
for nm, rot in (("rot4w", rot1),):
    k = reader2("r_kernel", 0, 4, 128, 128, xcdA % (128*1024), xcdB % (112*1024), X, W1, rot, 8, 2097152, 1835008)
    k2 = reader2("r2_kernel", 1, 4, 128, 128, xcdA2, xcdB2, X, W1, rot, 8, 2097152, 1835008)
    k3 = reader2("r3_kernel", 2, 4, 128, 128, xcdA2, xcdB2, X, W1, rot, 8, 2097152, 1835008)
    open(f"../exp/g1x_{nm}.s", "w").write(build([k, k2, k3]))
for wf, wn in (("", "plain"), ("sc1", "sc1"), ("nt", "nt"), ("sc0 sc1", "sc01")):
    for pf in (None, "xcd", "once"):
        for nm, rot in (("rot", rot1), ("norot", rot0)):
            if wn in ("nt", "sc01") and (pf != "xcd" or nm != "rot"): continue
            w = writer2("w_kernel", 0, 28, 0x1000000, wf, pf)
            k = reader2("r_kernel", 1, 4, 224, 224, g2A, g2B, HB, W2, rot, 8, 256*28*1024, 1835008)
            k2 = reader2("r2_kernel", 2, 4, 224, 224, g2A, g2B, HB, W2, rot, 8, 256*28*1024, 1835008)
            open(f"../exp/g2x_{wn}_{pf}_{nm}.s", "w").write(build([w, k, k2]))
```

```python
from micro14 import *
def wr(flags):
    k = Kernel("w_kernel", 256, 256, vgpr=16)
    prologue(k, 256)
    k(f"""
    s_add_u32 s44, s20, {B}
    s_addc_u32 s45, s21, 0
    s_mov_b32 s46, 0x4000000
    s_mov_b32 s47, 0x20000
    s_and_b32 s40, s2, 7
    s_lshl_b32 s40, s40, 5
    s_lshr_b32 s41, s2, 3
    s_add_u32 s40, s40, s41
    s_mul_i32 s40, s40, {28*1024}
    v_lshlrev_b32 v1, 4, v0
    """)
    for i in range(7): k(f"buffer_store_dwordx4 v[4:7], v1, s[44:47], s40 offen {flags}\ns_add_u32 s40, s40, 4096")
    k("s_waitcnt vmcnt(0)\ns_barrier")
    stamp_end(k, 0)
    return k
def rd2(shift):
    k = Kernel("r_kernel", 256, 256, vgpr=128)
    prologue(k, 256)
    k(f"""
    s_add_u32 s44, s20, {B}
    s_addc_u32 s45, s21, 0
    s_mov_b32 s46, 0x4000000
    s_mov_b32 s47, 0x20000
    s_add_u32 s40, s2, {shift}
    s_and_b32 s40, s40, 7
    s_lshr_b32 s41, s2, 5
    s_lshl_b32 s40, s40, 3
    s_add_u32 s40, s40, s41
    s_mul_i32 s40, s40, {112*1024}
    v_lshlrev_b32 v1, 4, v0
    """)
    for i in range(28): k(f"buffer_load_dwordx4 v[{8+4*i}:{11+4*i}], v1, s[44:47], s40 offen\ns_add_u32 s40, s40, 4096")
    k("s_waitcnt vmcnt(0)\ns_barrier")
    stamp_end(k, 1)
    return k
for fl, fn in (("", "plain"), ("sc1", "sc1"), ("sc0", "sc0")):
    for sh in (0, 3): open(f"../exp/rt_{fn}_{sh}.s", "w").write(build([wr(fl), rd2(sh)]))
```
